```python
import torch

def _softmax(x, axis=-1):
    return torch.softmax(x, dim=axis)
def _gelu(x):
    return torch.nn.functional.gelu(x, approximate="tanh")
def _silu(x):
    return torch.nn.functional.silu(x)
def _sigmoid(x):
    return torch.sigmoid(x)
def _layernorm(x, axis=-1, eps=1e-5):
    m = x.mean(dim=axis, keepdim=True)
    v = x.var(dim=axis, keepdim=True, unbiased=False)
    return (x - m) / torch.sqrt(v + eps)
def _scatter_add(tgt, idx, src, axis=0):
    return tgt.clone().index_add_(axis, idx, src)
def _segment_sum(src, seg, n):
    out = torch.zeros((n,) + src.shape[1:], dtype=src.dtype)
    return out.index_add_(0, seg, src)
def _pad(x, pw):
    flat = tuple(v for pair in reversed(pw) for v in pair)
    return torch.nn.functional.pad(x, flat)

kernel_name = 'concat_heads__ssm_conv_s5__mha_block__prompt'

def setup_inputs():

    _w = (lambda a: (lambda t: t.to(torch.bfloat16) if t.is_floating_point() else t)(torch.as_tensor(a)))
    def _A_setup():
        B, S, D = 1, 2048, 640
        P = D
        Lambda_re = -0.5 * (lambda _x: torch.exp(torch.as_tensor(_x)))((lambda *s: torch.randn(*s, dtype=torch.bfloat16) * 0.8)(P))
        Lambda_im = (lambda *s: torch.randn(*s, dtype=torch.bfloat16) * 0.8)(P) * 1.0
        B_re = (lambda *s: torch.randn(*s, dtype=torch.bfloat16) * 0.8)(P, D) * (D ** -0.5)
        B_im = (lambda *s: torch.randn(*s, dtype=torch.bfloat16) * 0.8)(P, D) * (D ** -0.5)
        C_re = (lambda *s: torch.randn(*s, dtype=torch.bfloat16) * 0.8)(D, P) * (P ** -0.5)
        C_im = (lambda *s: torch.randn(*s, dtype=torch.bfloat16) * 0.8)(D, P) * (P ** -0.5)
        log_dt = (lambda *s: torch.randn(*s, dtype=torch.bfloat16) * 0.8)(P) * 0.3 - 2.0
        Dskip = (lambda *s: torch.randn(*s, dtype=torch.bfloat16) * 0.8)(D)
        return {
            "x": _w((lambda *s: torch.randn(*s, dtype=torch.bfloat16) * 0.05)(B, S, D)),
            "Lambda_re": _w(Lambda_re),
            "Lambda_im": _w(Lambda_im),
            "B_re": _w(B_re),
            "B_im": _w(B_im),
            "C_re": _w(C_re),
            "C_im": _w(C_im),
            "log_dt": _w(log_dt),
            "Dskip": _w(Dskip),
        }
    _A_in = _A_setup()

    def _B_setup():
        B, S, D, H = 1, 2048, 640, 32
        return {
            "x": _w((lambda *s: torch.randn(*s, dtype=torch.bfloat16) * 0.2)(B, S, D)),
            "wqkv": _w((lambda *s: torch.randn(*s, dtype=torch.bfloat16) * 0.2)(D, 3 * D)),
            "wo": _w((lambda *s: torch.randn(*s, dtype=torch.bfloat16) * 0.05)(D, D)),
        }
    _B_in = _B_setup()

    return {
        "A_x": _A_in["x"],
        "A_Lambda_re": _A_in["Lambda_re"],
        "A_Lambda_im": _A_in["Lambda_im"],
        "A_B_re": _A_in["B_re"],
        "A_B_im": _A_in["B_im"],
        "A_C_re": _A_in["C_re"],
        "A_C_im": _A_in["C_im"],
        "A_log_dt": _A_in["log_dt"],
        "A_Dskip": _A_in["Dskip"],
        "B_x": _B_in["x"],
        "B_wqkv": _B_in["wqkv"],
        "B_wo": _B_in["wo"],
    }

def reference(A_x, A_Lambda_re, A_Lambda_im, A_B_re, A_B_im, A_C_re, A_C_im, A_log_dt, A_Dskip, B_x, B_wqkv, B_wo):
    def _A_ref(x, Lambda_re, Lambda_im, B_re, B_im, C_re, C_im, log_dt, Dskip):
        Bsz, L, H = x.shape
        Lam = Lambda_re + 1j * Lambda_im
        Bmat = B_re + 1j * B_im
        Cmat = C_re + 1j * C_im
        dt = torch.exp(log_dt)
        Lam_bar = torch.exp(dt * Lam)
        B_bar = ((Lam_bar - 1.0) / Lam)[:, None] * Bmat
        Bu = torch.einsum("bld,pd->blp", x + 0j, B_bar)
        h = torch.zeros_like(Bu[:, 0, :])
        hs = []
        for t in range(L):
            h = Lam_bar[None, :] * h + Bu[:, t, :]
            hs.append(h)
        hseq = torch.stack(hs, 1)
        y = 2.0 * torch.einsum("blp,dp->bld", hseq, Cmat).real + x * Dskip[None, None, :]
        return y

    def _B_ref(x, wqkv, wo):
        B, S, D = x.shape
        H = 32
        Dh = D // H
        qkv = (lambda x, *d: x.permute(*d))((x @ wqkv).reshape(B, S, 3, H, Dh), 2, 0, 3, 1, 4)
        q, k, v = qkv[0], qkv[1], qkv[2]
        scores = torch.einsum("bhqd,bhkd->bhqk", q, k) * (Dh ** -0.5)
        p = _softmax(scores, axis=-1)
        o = torch.einsum("bhqk,bhkd->bhqd", p, v)
        return (lambda x, *d: x.permute(*d))(o, 0, 2, 1, 3).reshape(B, S, D) @ wo

    a = _A_ref(A_x, A_Lambda_re, A_Lambda_im, A_B_re, A_B_im, A_C_re, A_C_im, A_log_dt, A_Dskip)
    b = _B_ref(B_x, B_wqkv, B_wo)
    return torch.concatenate([a, b], axis=-1)
```

```python
class Asm:
    def __init__(self):
        self.l = []
        self.uid = 0
    def __call__(self, s=""):
        for line in s.split("\n"):
            self.l.append("    " + line.strip() if line.strip() and not line.strip().endswith(":") else line.strip())
    def label(self, name):
        self.l.append(name + ":")
    def newlabel(self, base):
        self.uid += 1
        return f"L_{base}_{self.uid}"
    def text(self):
        return "\n".join(self.l) + "\n"

def vr(a, n=1):
    return f"v{a}" if n == 1 else f"v[{a}:{a+n-1}]"
def sr(a, n=1):
    return f"s{a}" if n == 1 else f"s[{a}:{a+n-1}]"

def srd(a, d, base, nbytes):
    a(f"s_mov_b32 s{d}, s{base}")
    a(f"s_and_b32 s{d+1}, s{base+1}, 0xffff")
    a(f"s_mov_b32 s{d+2}, {nbytes}")
    a(f"s_mov_b32 s{d+3}, 0x00020000")

def kdesc(name, vgpr, sgpr=96, acc=None):
    acc = acc or ((vgpr + 3) // 4 * 4)
    return f""".amdhsa_kernel {name}
  .amdhsa_next_free_vgpr {vgpr}
  .amdhsa_next_free_sgpr {sgpr}
  .amdhsa_accum_offset {acc}
  .amdhsa_group_segment_fixed_size 0
  .amdhsa_kernarg_size 120
  .amdhsa_user_sgpr_count 2
  .amdhsa_user_sgpr_kernarg_segment_ptr 1
  .amdhsa_system_sgpr_workgroup_id_x 1
.end_amdhsa_kernel
"""

import os
STAMP = int(os.environ.get("STAMP", "0"))
WS_STAMP = 0x1200000
def stamp(a, i):
    if not STAMP: return
    a(f"s_memtime s[90:91]")
    if i == 0: a("s_memrealtime s[92:93]")
    a("s_waitcnt lgkmcnt(0)")
    a(f"s_mov_b32 s{80+i}, s90")
    if i == 0:
        a("s_mov_b32 s86, s92")
        for j in range(1, 6): a(f"s_mov_b32 s{80+j}, s90")
def stamp_out(a, kidx, wsptr=8):
    if not STAMP: return
    a("s_waitcnt vmcnt(0)")
    stamp(a, 5)
    a("s_memrealtime s[92:93]")
    a("s_waitcnt lgkmcnt(0)")
    a("s_mov_b32 s87, s92")
    a(f"s_add_u32 s92, s{wsptr}, {WS_STAMP + kidx * 512 * 256}")
    a(f"s_addc_u32 s93, s{wsptr+1}, 0")
    a("s_and_b32 s93, s93, 0xffff")
    a("s_mov_b32 s94, 0x20000")
    a("s_mov_b32 s95, 0x00020000")
    a("v_lshrrev_b32 v1, 6, v0")
    a("v_lshlrev_b32 v1, 5, v1")
    a("s_lshl_b32 s90, s2, 8")
    a("v_add_u32 v1, s90, v1")
    for j in range(8):
        a(f"v_mov_b32 v{2+j}, s{80+j}")
    a("s_mov_b64 exec, 1")
    a("buffer_store_dwordx4 v[2:5], v1, s[92:95], 0 offen")
    a("buffer_store_dwordx4 v[6:9], v1, s[92:95], 0 offen offset:16")
    a("s_waitcnt vmcnt(0)")
```

```python
from asmlib import *
from layout import *

def gemm_mainloop(a, nst, nslots, pre, dma_items, reads, mfmas, need, rpos, dpos, nks=4):
    assert nslots >= pre + 2 or nst <= nslots
    ndma = len(dma_items(0))
    vm_issued = [st for st in range(min(pre, nst)) for _ in range(ndma)]
    def wait_stage(st):
        n = sum(1 for x in vm_issued if x > st)
        a(f"s_waitcnt vmcnt({n})")
        a("s_barrier")
    wait_stage(0)
    stamp(a, 2)
    R = reads(0, 0, 0)
    for r in R: a(r)
    nr = len(R)
    p = 0
    for s in range(nst):
        D = dma_items(s + pre) if s + pre < nst else []
        di = 0
        for ks in range(nks):
            last = (s == nst - 1 and ks == nks - 1)
            if ks == nks - 1 and s + 1 < nst:
                wait_stage(s + 1)
            N = [] if last else (reads(s, ks + 1, p ^ 1) if ks < nks - 1 else reads(s + 1, 0, p ^ 1))
            ni = 0
            M = mfmas(p)
            done = 0
            for i, m in enumerate(M):
                if need[i] > done:
                    a(f"s_waitcnt lgkmcnt({nr - need[i] + ni})")
                    done = need[i]
                a(m)
                for _ in range(rpos[i]):
                    if ni < len(N): a(N[ni]); ni += 1
                for _ in range(dpos[i]):
                    if di < len(D):
                        for x in D[di]: a(x)
                        vm_issued.append(s + pre); di += 1
            assert ni == len(N)
            p ^= 1
        assert di == len(D)

def xw_gemm_setup(a, xstride, wstride, srow, scolb, swave):
    a("v_lshrrev_b32 v3, 3, v2")
    a("v_and_b32 v8, 7, v2")
    a("v_lshrrev_b32 v9, 1, v3")
    a("v_xor_b32 v10, v8, v9")
    a("v_xor_b32 v11, 4, v10")
    a(f"s_lshl_b32 s31, s{swave}, 5")
    a(f"s_add_u32 s30, s{srow}, s31")
    a("v_add_u32 v3, s30, v3")
    a(f"v_mul_u32_u24 v3, {xstride}, v3")
    a("v_lshl_add_u32 v4, v10, 4, v3")
    a("v_lshl_add_u32 v5, v11, 4, v3")
    a(f"v_add_u32 v5, {8 * xstride - 1024}, v5")
    a(f"v_add_u32 v6, {16 * xstride - 2048}, v4")
    a(f"v_add_u32 v7, {16 * xstride - 2048}, v5")
    a("v_lshrrev_b32 v3, 4, v2")
    a("v_and_b32 v8, 15, v2")
    a("v_lshlrev_b32 v9, 2, v3")
    a("v_xor_b32 v8, v8, v9")
    a(f"s_lshl_b32 s31, s{swave}, 4")
    a("v_add_u32 v3, s31, v3")
    a(f"v_mul_u32_u24 v3, {wstride}, v3")
    a("v_lshl_add_u32 v12, v8, 4, v3")
    a(f"v_add_u32 v12, s{scolb}, v12")
    for jj in range(1, 4):
        a(f"v_add_u32 v{12+jj}, {jj * (4 * wstride - 1024)}, v12")
    a(f"s_lshl_b32 s34, s{swave}, 12")

def xw_dma(st, nsl, wstride):
    base = (st % nsl) * 32768
    L = []
    for jj in range(4):
        pre = [f"s_add_u32 m0, s34, {base}", f"s_mov_b32 s32, {st * 128}"] if jj == 0 else []
        L.append(pre + [f"buffer_load_dwordx4 v{4+jj}, s[12:15], s32 offen offset:{jj*1024} lds"])
    for jj in range(4):
        pre = [f"s_add_u32 m0, s34, {base + 16384}", f"s_mov_b32 s33, {st * 64 * wstride}"] if jj == 0 else []
        L.append(pre + [f"buffer_load_dwordx4 v{12+jj}, s[16:19], s33 offen offset:{jj*1024} lds"])
    return L

def xw_read_setup(a, swave, nsets):
    a("v_and_b32 v3, 31, v2")
    a(f"s_lshr_b32 s30, s{swave}, 1")
    a("s_lshl_b32 s30, s30, 6")
    a("v_add_u32 v3, s30, v3")
    a("v_lshrrev_b32 v8, 1, v3")
    a("v_and_b32 v8, 7, v8")
    a("v_lshrrev_b32 v9, 5, v2")
    a("v_xor_b32 v8, v8, v9")
    a("v_lshlrev_b32 v3, 7, v3")
    for ks in range(4):
        a(f"v_xor_b32 v10, {2*ks}, v8")
        a(f"v_lshl_add_u32 v{20+ks}, v10, 4, v3")
    a("v_bfe_u32 v3, v2, 2, 2")
    a("v_lshl_add_u32 v8, v9, 3, v3")
    a("v_lshlrev_b32 v8, 8, v8")
    a("v_bfe_u32 v10, v2, 4, 1")
    a("v_lshlrev_b32 v10, 5, v10")
    a("v_and_b32 v11, 3, v2")
    a("v_lshl_add_u32 v10, v11, 3, v10")
    a("v_add3_u32 v8, v8, v10, 0")
    a("v_add_u32 v8, 16384, v8")
    a(f"s_and_b32 s30, s{swave}, 1")
    a("s_lshl_b32 s30, s30, 1")
    for fi in range(2):
        a(f"s_add_u32 s31, s30, {fi}")
        a("v_xor_b32 v10, s31, v3")
        a(f"v_lshl_add_u32 v{24+fi}, v10, 6, v8")
    for q in range(1, nsets):
        for j in range(6):
            a(f"v_add_u32 v{20+6*q+j}, {q * 65536}, v{20+j}")

STFLAG = os.environ.get("STFLAG", "")
FR = 40
ACC = 72

def xw_read(st, ks, p, nsl):
    slot = st % nsl
    q, o = slot // 2, (slot % 2) * 32768
    f = FR + 16 * p
    L = [f"ds_read_b128 v[{f}:{f+3}], v{20+6*q+ks} offset:{o}"]
    for fi in range(2):
        for qq in range(2):
            r = f + 8 + 4 * fi + 2 * qq
            L.append(f"ds_read_b64_tr_b16 v[{r}:{r+1}], v{24+6*q+fi} offset:{o + (16*ks + 4*qq) * 256}")
        if fi == 0:
            L.append(f"ds_read_b128 v[{f+4}:{f+7}], v{20+6*q+ks} offset:{o + 4096}")
    return L

def xw_mfma(p):
    f = FR + 16 * p
    L = []
    for (ti, fi) in ((0, 0), (1, 0), (0, 1), (1, 1)):
        c = ACC + 16 * (2 * ti + fi)
        L.append(f"v_mfma_f32_32x32x16_bf16 v[{c}:{c+15}], v[{f+4*ti}:{f+4*ti+3}], v[{f+8+4*fi}:{f+8+4*fi+3}], v[{c}:{c+15}]")
    return L

def k1(a):
    NSL = 5
    PRE = int(os.environ.get("PRE", "3"))
    a.label("k1_kernel")
    a("s_cmp_ge_u32 s2, 256")
    a("s_cbranch_scc1 L_k1_end")
    stamp(a, 0)
    a("s_load_dwordx4 s[4:7], s[0:1], 72")
    a("s_load_dwordx2 s[8:9], s[0:1], 112")
    a("s_and_b32 s24, s2, 7")
    a("s_lshr_b32 s25, s2, 3")
    a("s_and_b32 s26, s24, 3")
    a("s_lshl_b32 s26, s26, 2")
    a("s_and_b32 s27, s25, 3")
    a("s_add_u32 s26, s26, s27")
    a("s_lshr_b32 s27, s24, 2")
    a("s_lshl_b32 s27, s27, 3")
    a("s_lshr_b32 s28, s25, 2")
    a("s_add_u32 s27, s27, s28")
    a("s_cmp_eq_u32 s27, 15")
    a("s_cbranch_scc1 L_prep")
    a("v_lshrrev_b32 v1, 6, v0")
    a("v_and_b32 v2, 63, v0")
    a("v_readfirstlane_b32 s29, v1")
    a("s_lshl_b32 s35, s26, 7")
    a("s_lshl_b32 s36, s27, 8")
    xw_gemm_setup(a, 1280, 3840, 35, 36, 29)
    a("s_waitcnt lgkmcnt(0)")
    srd(a, 12, 4, 2621440)
    srd(a, 16, 6, 640 * 3840)
    for st in range(PRE):
        for g in xw_dma(st, NSL, 3840):
            for x in g: a(x)
    srd(a, 20, 8, WS_O)
    xw_read_setup(a, 29, 3)
    for i in range(64):
        a(f"v_mov_b32 v{ACC+i}, 0")
    a("s_mul_i32 s37, s27, 52")
    a("s_lshr_b32 s37, s37, 8")
    a("s_mul_i32 s38, s37, 5")
    a("s_sub_u32 s38, s27, s38")
    a("s_lshl_b32 s38, s38, 7")
    a("s_and_b32 s39, s29, 1")
    a("s_lshl_b32 s39, s39, 6")
    a("s_add_u32 s38, s38, s39")
    a("s_cmp_eq_u32 s37, 2")
    a("s_cselect_b32 s40, 16, 32")
    a("s_cselect_b32 s41, 320, 16")
    a("s_cmp_eq_u32 s37, 0")
    a(f"s_cselect_b32 s42, {f2u(QSCALE)}, 1.0")
    a(f"s_mul_i32 s43, s37, {WS_K}")
    a("s_lshr_b32 s44, s29, 1")
    a("s_lshl_b32 s44, s44, 2")
    a("s_lshl_b32 s45, s26, 3")
    a("s_add_u32 s44, s44, s45")
    a("s_mul_i32 s44, s44, 640")
    a("s_add_u32 s43, s43, s44")
    a("v_lshrrev_b32 v9, 5, v2")
    a("v_mul_lo_u32 v9, v9, s41")
    a("v_add_u32 v9, s43, v9")
    a("v_and_b32 v3, 31, v2")
    a("v_add_u32 v3, s38, v3")
    a(f"s_mov_b32 s46, {HEADB}")
    for fi in range(2):
        if fi: a("v_add_u32 v3, 32, v3")
        a("v_mul_u32_u24 v8, 3277, v3")
        a("v_lshrrev_b32 v8, 16, v8")
        a("v_mul_u32_u24 v10, 20, v8")
        a("v_sub_u32 v10, v3, v10")
        a("v_mul_lo_u32 v10, v10, s40")
        a("v_mul_lo_u32 v8, v8, s46")
        a(f"v_add3_u32 v{16+fi}, v8, v10, v9")
    stamp(a, 1)
    gemm_mainloop(a, 10, NSL, PRE, lambda st: xw_dma(st, NSL, 3840), lambda st, ks, p: xw_read(st, ks, p, NSL),
                  xw_mfma, [3, 4, 6, 6], [3, 3, 0, 0], [0, 0, 1, 1])
    stamp(a, 3)
    a("s_nop 9")
    for t4 in range(4):
        t = (0, 2, 1, 3)[t4]
        ti, fi = t >> 1, t & 1
        c = ACC + 16 * t
        for i in range(16):
            a(f"v_mul_f32 v{c+i}, s42, v{c+i}")
        for i in range(8):
            a(f"v_cvt_pk_bf16_f32 v{FR+8*t4+i}, v{c+2*i}, v{c+2*i+1}")
        for b in range(2):
            r = FR + 8 * t4 + 4 * b
            a(f"buffer_store_dwordx4 v[{r}:{r+3}], v{16+fi}, s[20:23], 0 offen offset:{(2*ti+b)*640}{STFLAG}")
    stamp(a, 4)
    stamp_out(a, 0)
    a("s_endpgm")
    prep(a)
    a.label("L_k1_end")
    a("s_endpgm")

def cmul(a, dr, di, ar, ai, br, bi):
    a(f"v_mul_f32 v{dr}, v{ar}, v{br}")
    a(f"v_mul_f32 v{di}, v{ar}, v{bi}")
    a(f"v_fma_f32 v{dr}, -v{ai}, v{bi}, v{dr}")
    a(f"v_fma_f32 v{di}, v{ai}, v{br}, v{di}")

def prep(a):
    a.label("L_prep")
    a("s_load_dwordx4 s[12:15], s[0:1], 8")
    a("s_load_dwordx4 s[16:19], s[0:1], 40")
    a("s_load_dwordx4 s[20:23], s[0:1], 56")
    a("v_mul_u32_u24 v1, 820, v0")
    a("v_lshrrev_b32 v1, 16, v1")
    a("v_mul_u32_u24 v2, 80, v1")
    a("v_sub_u32 v2, v0, v2")
    a("s_mul_i32 s28, s26, 40")
    a("v_add_u32 v3, s28, v1")
    a("v_mul_u32_u24 v4, 1280, v3")
    a("v_lshl_add_u32 v4, v2, 4, v4")
    a(f"v_mul_u32_u24 v5, {W2_ROW}, v3")
    a("v_lshl_add_u32 v5, v2, 5, v5")
    a("v_mov_b32 v6, 0x7f000000")
    a("v_cmp_gt_u32 vcc, 240, v0")
    a("s_nop 1")
    a("v_cndmask_b32 v4, v6, v4, vcc")
    a("v_cndmask_b32 v5, v6, v5, vcc")
    a("v_cmp_eq_u32 vcc, 0, v1")
    a("s_nop 1")
    a("v_cndmask_b32 v7, v6, v4, vcc")
    a("v_cndmask_b32 v8, v6, v5, vcc")
    a("s_waitcnt lgkmcnt(0)")
    srd(a, 36, 16, 819200)
    srd(a, 40, 18, 819200)
    srd(a, 44, 12, 1280)
    srd(a, 48, 14, 1280)
    srd(a, 52, 20, 1280)
    srd(a, 56, 22, 1280)
    a(f"s_add_u32 s60, s8, {WS_W2}")
    a("s_addc_u32 s61, s9, 0")
    a("s_and_b32 s61, s61, 0xffff")
    a(f"s_mov_b32 s62, {640 * W2_ROW}")
    a("s_mov_b32 s63, 0x00020000")
    a(f"s_add_u32 s64, s8, {WS_LAM}")
    a("s_addc_u32 s65, s9, 0")
    a("s_and_b32 s65, s65, 0xffff")
    a("s_cmp_eq_u32 s26, 0")
    a(f"s_cselect_b32 s66, {640 * 32}, 0")
    a("s_mov_b32 s67, 0x00020000")
    a("v_lshlrev_b32 v9, 1, v0")
    for j in range(3):
        a(f"buffer_load_ushort v{10+3*j}, v9, s[44:47], 0 offen offset:{512*j}")
        a(f"buffer_load_ushort v{11+3*j}, v9, s[48:51], 0 offen offset:{512*j}")
        a(f"buffer_load_ushort v{12+3*j}, v9, s[52:55], 0 offen offset:{512*j}")
    CB = 64
    for j in range(14):
        vo = 4 if j < 13 else 7
        a(f"s_mov_b32 s30, {j * 3 * 1280}")
        a(f"buffer_load_dwordx4 v[{CB+8*j}:{CB+8*j+3}], v{vo}, s[36:39], s30 offen")
        a(f"buffer_load_dwordx4 v[{CB+8*j+4}:{CB+8*j+7}], v{vo}, s[40:43], s30 offen")
    a("s_waitcnt vmcnt(28)")
    LOG2E = f2u(math.log2(math.e))
    INV2PI = f2u(1.0 / (2 * math.pi))
    for j in range(3):
        lr, li, ld = 10 + 3 * j, 11 + 3 * j, 12 + 3 * j
        a(f"v_lshlrev_b32 v{lr}, 16, v{lr}")
        a(f"v_lshlrev_b32 v{li}, 16, v{li}")
        a(f"v_lshlrev_b32 v{ld}, 16, v{ld}")
        a(f"v_mul_f32 v{ld}, {LOG2E}, v{ld}")
        a(f"v_exp_f32 v{ld}, v{ld}")
        a("s_nop 0")
        a(f"v_cvt_pk_bf16_f32 v{ld}, v{ld}, v{ld}")
        a(f"v_lshlrev_b32 v{ld}, 16, v{ld}")
        a(f"v_mul_f32 v20, v{ld}, v{lr}")
        a(f"v_mul_f32 v21, v{ld}, v{li}")
        a(f"v_mul_f32 v20, {LOG2E}, v20")
        a(f"v_mul_f32 v21, {INV2PI}, v21")
        a("v_exp_f32 v20, v20")
        a("v_fract_f32 v21, v21")
        a("v_cos_f32 v22, v21")
        a("v_sin_f32 v23, v21")
        a("s_nop 0")
        a("v_mul_f32 v24, v20, v22")
        a("v_mul_f32 v25, v20, v23")
        a("v_add_f32 v20, -1.0, v24")
        a(f"v_mul_f32 v21, v{lr}, v{lr}")
        a(f"v_fma_f32 v21, v{li}, v{li}, v21")
        a("v_rcp_f32 v21, v21")
        a(f"v_mul_f32 v22, v20, v{lr}")
        a(f"v_fma_f32 v22, v25, v{li}, v22")
        a(f"v_mul_f32 v23, v25, v{lr}")
        a(f"v_fma_f32 v23, -v20, v{li}, v23")
        a("v_add_f32 v21, v21, v21")
        a("v_mul_f32 v22, v22, v21")
        a("v_mul_f32 v23, v23, v21")
        a("v_lshlrev_b32 v20, 3, v0")
        a(f"ds_write_b64 v20, v[22:23] offset:{2048*j}")
        cmul(a, 32, 33, 24, 25, 24, 25)
        cmul(a, 34, 35, 32, 33, 32, 33)
        cmul(a, 26, 27, 34, 35, 34, 35)
        cmul(a, 28, 29, 26, 27, 26, 27)
        cmul(a, 32, 33, 28, 29, 28, 29)
        cmul(a, 34, 35, 32, 33, 32, 33)
        cmul(a, 30, 31, 34, 35, 34, 35)
        a("v_lshlrev_b32 v20, 5, v0")
        a(f"v_add_u32 v20, {8192*j}, v20")
        a("buffer_store_dwordx4 v[24:27], v20, s[64:67], 0 offen")
        a("buffer_store_dwordx4 v[28:31], v20, s[64:67], 0 offen offset:16")
        a("s_nop 1")
    for ps in range(2):
        a(f"v_add_u32 v20, {256*ps}, v0")
        a("v_lshrrev_b32 v21, 3, v20")
        a("v_add_u32 v21, s28, v21")
        a("v_lshlrev_b32 v22, 1, v21")
        a(f"buffer_load_ushort v{36+ps}, v22, s[56:59], 0 offen")
        a("v_and_b32 v22, 7, v20")
        a(f"v_mul_u32_u24 v23, {W2_ROW}, v21")
        a(f"v_lshl_add_u32 v23, v22, 4, v23")
        a(f"v_add_u32 v{38+ps}, 2560, v23")
        a("v_and_b32 v21, 63, v21")
        a("v_lshlrev_b32 v22, 3, v22")
        a(f"v_sub_u32 v{40+ps}, v21, v22")
    a("v_cmp_gt_u32 vcc, 64, v0")
    a("s_nop 1")
    a("v_cndmask_b32 v39, v6, v39, vcc")
    a("s_waitcnt lgkmcnt(0)")
    a("s_barrier")
    a("v_lshlrev_b32 v20, 6, v2")
    for q in range(4):
        a(f"ds_read_b128 v[{44+4*q}:{47+4*q}], v20 offset:{16*q}")
    a("s_waitcnt vmcnt(0)")
    for ps in range(2):
        a(f"v_and_b32 v20, 1, v{40+ps}")
        a("v_lshlrev_b32 v20, 4, v20")
        a(f"v_lshlrev_b32 v21, v20, v{36+ps}")
        a(f"v_lshrrev_b32 v20, 1, v{40+ps}")
        for q in range(4):
            a(f"v_cmp_eq_u32 vcc, {q}, v20")
            a("s_nop 1")
            a(f"v_cndmask_b32 v{24+q}, 0, v21, vcc")
        a(f"buffer_store_dwordx4 v[24:27], v{38+ps}, s[60:63], 0 offen")
        a("s_nop 1")
    a("s_waitcnt lgkmcnt(0)")
    a("s_mov_b32 s31, 0xffff0000")
    for j in range(14):
        cr, ci = CB + 8 * j, CB + 8 * j + 4
        o = 24 + 8 * (j & 1)
        for e in range(8):
            if e & 1:
                a(f"v_and_b32 v20, s31, v{cr + e//2}")
                a(f"v_and_b32 v21, s31, v{ci + e//2}")
            else:
                a(f"v_lshlrev_b32 v20, 16, v{cr + e//2}")
                a(f"v_lshlrev_b32 v21, 16, v{ci + e//2}")
            ca, cb = 44 + 2 * e, 45 + 2 * e
            a(f"v_mul_f32 v22, v{ca}, v20")
            a(f"v_mul_f32 v23, v{ca}, v21")
            a(f"v_fma_f32 v22, -v{cb}, v21, v22")
            a(f"v_fma_f32 v23, v{cb}, v20, v23")
            a(f"v_cvt_pk_bf16_f32 v{o+e}, v22, -v23")
        vo = 5 if j < 13 else 8
        a(f"s_mov_b32 s30, {j * 3 * W2_ROW}")
        a(f"buffer_store_dwordx4 v[{o}:{o+3}], v{vo}, s[60:63], s30 offen{STFLAG}")
        a(f"buffer_store_dwordx4 v[{o+4}:{o+7}], v{vo}, s[60:63], s30 offen offset:16{STFLAG}")
    stamp_out(a, 0)
    a("s_endpgm")
```

```python
from asmlib import *
from layout import *
import ssm1

SA, SB, OO, CC, Q1, Q2, K2, K1, VA, VB = 16, 32, 48, 64, 80, 84, 86, 88, 92, 96
SLOTB = 20480
PRIV = 61440

def k_reads(t, nxt):
    ak, ak2 = (7, 8) if nxt else (4, 5)
    o = t * 1280
    return [f"ds_read_b64_tr_b16 v[{K2}:{K2+1}], v{ak2} offset:{o}",
            f"ds_read_b64_tr_b16 v[{K1}:{K1+1}], v{ak} offset:{o}",
            f"ds_read_b64_tr_b16 v[{K1+2}:{K1+3}], v{ak} offset:{o+128}"]
def v_reads(t, nxt):
    av = 9 if nxt else 6
    o = t * 1280
    return ["s_mov_b64 exec, s[40:41]",
            f"ds_read_b128 v[{VA}:{VA+3}], v{av} offset:{o}",
            f"ds_read_b128 v[{VB}:{VB+3}], v{av} offset:{o+640}",
            "s_mov_b64 exec, -1"]

def issue_chunk(a):
    a("s_mov_b32 m0, s47")
    a("s_add_u32 s48, s47, 8192")
    a("buffer_load_dwordx4 v3, s[12:15], s44 offen lds")
    a("s_mov_b32 m0, s48")
    a("s_add_u32 s48, s47, 16384")
    a("buffer_load_dwordx4 v3, s[12:15], s45 offen lds")
    L = a.newlabel("skip3")
    a("s_cmp_ge_u32 s29, 4")
    a(f"s_cbranch_scc1 {L}")
    a("s_mov_b32 m0, s48")
    a("s_nop 0")
    a("buffer_load_dwordx4 v3, s[12:15], s46 offen lds")
    a.label(L)
    for i in range(3):
        a(f"s_add_u32 s{44+i}, s{44+i}, 10240")

SCHED = int(os.environ.get("SCHED", "1"))
def tile_body(a, A, B, t):
    x8 = f"v_mfma_f32_32x32x8_bf16 v[{B}:{B+15}], v[{K2}:{K2+1}], v[{Q2}:{Q2+1}], v[{CC}:{CC+15}]"
    x16 = f"v_mfma_f32_32x32x16_bf16 v[{B}:{B+15}], v[{K1}:{K1+3}], v[{Q1}:{Q1+3}], v[{B}:{B+15}]"
    pva = f"v_mfma_f32_32x32x16_bf16 v[{OO}:{OO+15}], v[{VA}:{VA+3}], v[{A}:{A+3}], v[{OO}:{OO+15}]"
    pvb = f"v_mfma_f32_32x32x16_bf16 v[{OO}:{OO+15}], v[{VB}:{VB+3}], v[{A+8}:{A+11}], v[{OO}:{OO+15}]"
    def ex(lo, hi):
        for r in range(lo, hi): a(f"v_exp_f32 v{A+r}, v{A+r}")
    def cv(b):
        for r in range(4): a(f"v_cvt_pk_bf16_f32 v{A+b+r}, v{A+b+2*r}, v{A+b+1+2*r}")
    kr = k_reads((t + 2) % 8, t + 2 >= 8)
    vr_ = v_reads((t + 1) % 8, t + 1 >= 8)
    if SCHED == 0:
        a("s_waitcnt lgkmcnt(2)"); a(x8); ex(0, 4); a(x16)
        for x in kr: a(x)
        ex(4, 8); cv(0); ex(8, 12)
        a("s_waitcnt lgkmcnt(3)"); a(pva); ex(12, 16); cv(8); a("s_nop 1"); a(pvb)
        for x in vr_: a(x)
    elif SCHED == 1:
        ex(0, 4); a("s_waitcnt lgkmcnt(2)"); a(x8); ex(4, 8); cv(0); a(x16)
        for x in kr: a(x)
        ex(8, 12); a("s_waitcnt lgkmcnt(3)"); a(pva); ex(12, 16); cv(8); a("s_nop 1"); a(pvb)
        for x in vr_: a(x)
    elif SCHED == 2:
        ex(0, 4); a(x8); ex(4, 8); cv(0); a(x16)
        ex(8, 12); a(pva); ex(12, 16); cv(8); a("s_nop 1"); a(pvb)
    elif SCHED == 3:
        ex(0, 2)
        a(f"v_mfma_f32_32x32x16_bf16 v[{OO}:{OO+15}], v[{VB}:{VB+3}], v[{B+8}:{B+11}], v[{OO}:{OO+15}]")
        vr2 = v_reads(t, False)
        a(vr2[0]); a(vr2[2]); a(vr2[3])
        ex(2, 6); a("s_waitcnt lgkmcnt(2)"); a(x8); ex(6, 8); cv(0); ex(8, 10); a(x16)
        for x in kr: a(x)
        ex(10, 14); a("s_waitcnt lgkmcnt(4)"); a(pva)
        a(vr_[0]); a(vr_[1]); a(vr_[3])
        ex(14, 16); a("s_waitcnt lgkmcnt(4)"); cv(8)

def finish(a, check):
    a("s_nop 11")
    if check:
        a(f"v_mov_b32 v{SA}, v{OO+12}")
        for r in range(12): a(f"v_fma_f32 v{SA}, v{OO+r}, 0, v{SA}")
        a(f"v_cmp_gt_f32 vcc, {hex(f2u(2.0**40))}, v{SA}")
        a("s_nop 3")
        a("s_cmp_eq_u64 vcc, -1")
        a("s_cbranch_scc0 L_att_slow")
        a.label("L_att_store")
    a(f"v_rcp_f32 v{SA}, v{OO+12}")
    a("s_nop 0")
    for r in range(12): a(f"v_mul_f32 v{OO+r}, v{OO+r}, v{SA}")
    for r in range(6): a(f"v_cvt_pk_bf16_f32 v{SB+r}, v{OO+2*r}, v{OO+2*r+1}")
    a(f"buffer_store_dwordx2 v[{SB}:{SB+1}], v13, s[16:19], 0 offen")
    a(f"buffer_store_dwordx2 v[{SB+2}:{SB+3}], v13, s[16:19], 0 offen offset:16")
    a(f"buffer_store_dwordx2 v[{SB+4}:{SB+5}], v14, s[16:19], 0 offen offset:32")

def rowmax(a, S, dst):
    a(f"v_max3_f32 v{dst}, v{S}, v{S+1}, v{S+2}")
    for r in range(3, 15, 2): a(f"v_max3_f32 v{dst}, v{dst}, v{S+r}, v{S+r+1}")
    a(f"v_max_f32 v{dst}, v{dst}, v{S+15}")
    a(f"v_mov_b32 v15, v{dst}")
    a("s_nop 1")
    a(f"v_permlane32_swap_b32 v15, v{dst}")
    a("s_nop 1")
    a(f"v_max_f32 v{dst}, v{dst}, v15")

def att(a):
    a("v_lshrrev_b32 v1, 6, v0")
    a("v_and_b32 v2, 63, v0")
    a("v_readfirstlane_b32 s29, v1")
    a("s_and_b32 s24, s2, 7")
    a("s_lshr_b32 s25, s2, 3")
    a("s_lshl_b32 s26, s24, 2")
    a("s_lshr_b32 s27, s25, 3")
    a("s_add_u32 s26, s26, s27")
    a("s_and_b32 s27, s25, 7")
    a("s_lshl_b32 s27, s27, 3")
    a("s_add_u32 s27, s27, s29")
    a(f"s_mul_i32 s28, s26, {HEADB}")
    a("v_lshlrev_b32 v3, 4, v2")
    a("s_lshl_b32 s47, s29, 10")
    a("s_add_u32 s30, s28, s47")
    a(f"s_add_u32 s44, s30, {WS_K}")
    a("s_cmp_lt_u32 s29, 2")
    a(f"s_mov_b32 s31, {WS_K + 8192}")
    a(f"s_cselect_b32 s31, s31, {WS_V + 8192 - 10240}")
    a("s_add_u32 s45, s30, s31")
    a(f"s_add_u32 s46, s30, {WS_V + 16384 - 10240}")
    a("s_mul_i32 s31, s27, 1280")
    a("s_add_u32 s31, s31, s28")
    a("s_mul_i32 s42, s29, 2560")
    a(f"s_add_u32 s42, s42, {PRIV}")
    a("s_waitcnt lgkmcnt(0)")
    srd(a, 12, 8, WS_O)
    a("s_mov_b32 m0, s42")
    a("s_nop 0")
    a("buffer_load_dwordx4 v3, s[12:15], s31 offen lds")
    a("buffer_load_dwordx4 v3, s[12:15], s31 offen offset:1024 lds")
    issue_chunk(a)
    a(f"s_add_u32 s47, s47, {SLOTB}")
    issue_chunk(a)
    a(f"s_add_u32 s47, s47, {SLOTB}")
    a(f"s_add_u32 s16, s8, {WS_O}")
    a("s_addc_u32 s17, s9, 0")
    a("s_and_b32 s17, s17, 0xffff")
    a(f"s_mov_b32 s18, {2048 * 1280}")
    a("s_mov_b32 s19, 0x00020000")
    a("s_mov_b32 s40, 0x000fffff")
    a("s_mov_b32 s41, 0x000fffff")
    a("v_bfe_u32 v4, v2, 4, 1")
    a("v_mul_u32_u24 v4, 640, v4")
    a("v_bfe_u32 v5, v2, 2, 2")
    a("v_lshl_add_u32 v4, v5, 5, v4")
    a("v_and_b32 v5, 1, v2")
    a("v_lshl_add_u32 v4, v5, 4, v4")
    a("v_bfe_u32 v5, v2, 1, 1")
    a("v_lshl_add_u32 v4, v5, 3, v4")
    a("v_add_u32 v11, 512, v4")
    a("v_lshrrev_b32 v5, 5, v2")
    a("v_lshl_add_u32 v10, v5, 8, v4")
    a("v_and_b32 v6, 31, v2")
    a("v_mul_u32_u24 v7, 320, v5")
    a("v_lshl_add_u32 v12, v6, 4, v7")
    a("v_add_u32 v12, 10240, v12")
    a("s_lshl_b32 s30, s27, 5")
    a("v_add_u32 v7, s30, v6")
    a("v_mul_u32_u24 v7, 1280, v7")
    a("s_mul_i32 s30, s26, 40")
    a("v_lshl_add_u32 v13, v5, 3, v7")
    a("v_add_u32 v13, s30, v13")
    a("v_cmp_gt_u32 vcc, 32, v2")
    a("v_mov_b32 v7, 0x7f000000")
    a("s_nop 0")
    a("v_cndmask_b32 v14, v7, v13, vcc")
    for r in range(8): a(f"v_mov_b32 v{VA+r}, 0x3f803f80")
    for r in range(16): a(f"v_mov_b32 v{OO+r}, 0")
    a("v_add_u32 v7, s42, v10")
    a("v_add_u32 v8, s42, v11")
    a("v_mov_b32 v4, v10")
    a("v_mov_b32 v5, v11")
    a("v_mov_b32 v6, v12")
    a("s_waitcnt vmcnt(4)")
    a(f"ds_read_b64_tr_b16 v[{Q2}:{Q2+1}], v8")
    a(f"ds_read_b64_tr_b16 v[{Q1}:{Q1+1}], v7")
    a(f"ds_read_b64_tr_b16 v[{Q1+2}:{Q1+3}], v7 offset:128")
    stamp(a, 1)
    a("s_waitcnt vmcnt(2)")
    a("s_barrier")
    stamp(a, 2)
    for x in k_reads(0, False): a(x)
    a("s_waitcnt lgkmcnt(3)")
    a(f"v_cndmask_b32 v{Q2}, 0, v{Q2}, vcc")
    a(f"v_cndmask_b32 v{Q2+1}, 0, v{Q2+1}, vcc")
    a("s_waitcnt lgkmcnt(0)")
    a("s_nop 0")
    a(f"v_mfma_f32_32x32x8_bf16 v[{SA}:{SA+15}], v[{K2}:{K2+1}], v[{Q2}:{Q2+1}], 0")
    a(f"v_mfma_f32_32x32x16_bf16 v[{SA}:{SA+15}], v[{K1}:{K1+3}], v[{Q1}:{Q1+3}], v[{SA}:{SA+15}]")
    for x in k_reads(1, False): a(x)
    for x in v_reads(0, False): a(x)
    a(f"v_add_u32 v7, {SLOTB}, v10")
    a(f"v_add_u32 v8, {SLOTB}, v11")
    a(f"v_add_u32 v9, {SLOTB}, v12")
    a("s_mov_b32 s43, 0")
    a(f"s_mov_b32 s49, {SLOTB}")
    a("s_nop 2")
    rowmax(a, SA, CC)
    a(f"v_sub_f32 v{CC}, 0, v{CC}")
    for r in range(1, 16): a(f"v_mov_b32 v{CC+r}, v{CC}")
    for r in range(16): a(f"v_add_f32 v{SA+r}, v{SA+r}, v{CC}")
    a(".p2align 4")
    a.label("L_att_loop")
    for t in range(8):
        if t == 6:
            L = a.newlabel("nodma")
            a("s_waitcnt vmcnt(0)")
            a("s_barrier")
            a("s_cmp_ge_u32 s43, 6")
            a(f"s_cbranch_scc1 {L}")
            issue_chunk(a)
            a(f"s_add_u32 s47, s47, {SLOTB}")
            a(f"s_cmp_ge_u32 s47, {3 * SLOTB}")
            a(f"s_cselect_b32 s48, {3 * SLOTB}, 0")
            a("s_sub_u32 s47, s47, s48")
            a.label(L)
        tile_body(a, SA if t % 2 == 0 else SB, SB if t % 2 == 0 else SA, t)
    a("v_mov_b32 v4, v7")
    a("v_mov_b32 v5, v8")
    a("v_mov_b32 v6, v9")
    a(f"s_add_u32 s49, s49, {SLOTB}")
    a(f"s_cmp_ge_u32 s49, {3 * SLOTB}")
    a("s_cselect_b32 s49, 0, s49")
    a("v_add_u32 v7, s49, v10")
    a("v_add_u32 v8, s49, v11")
    a("v_add_u32 v9, s49, v12")
    a("s_add_u32 s43, s43, 1")
    a("s_cmp_lt_u32 s43, 8")
    a("s_cbranch_scc1 L_att_loop")
    stamp(a, 3)
    finish(a, True)
    stamp_out(a, 1)
    a("s_endpgm")
    a.label("L_att_slow")
    a("s_waitcnt lgkmcnt(0)")
    a("v_add_u32 v4, s42, v10")
    a("v_add_u32 v5, s42, v11")
    a("v_add_u32 v6, s42, v12")
    a(f"v_subrev_u32 v6, {10240 - 1280}, v6")
    a(f"v_mov_b32 v7, 0xff800000")
    for r in range(16): a(f"v_mov_b32 v{OO+r}, 0")
    a("s_add_u32 s48, s42, 1280")
    for ps in range(2):
        a(f"s_add_u32 s44, s28, {WS_K}")
        a(f"s_add_u32 s45, s28, {WS_V}")
        a("s_mov_b32 s43, 0")
        a.label(f"L_att_slow{ps}")
        a("s_mov_b32 m0, s42")
        a("s_nop 0")
        a("buffer_load_dwordx4 v3, s[12:15], s44 offen lds")
        a("s_mov_b64 exec, 0xffff")
        a("buffer_load_dwordx4 v3, s[12:15], s44 offen offset:1024 lds")
        a("s_mov_b64 exec, -1")
        if ps:
            a("s_mov_b32 m0, s48")
            a("s_nop 0")
            a("buffer_load_dwordx4 v3, s[12:15], s45 offen lds")
            a("s_mov_b64 exec, 0xffff")
            a("buffer_load_dwordx4 v3, s[12:15], s45 offen offset:1024 lds")
            a("s_mov_b64 exec, -1")
        a("s_waitcnt vmcnt(0)")
        for x in k_reads(0, False): a(x)
        if ps:
            for x in v_reads(0, False): a(x)
        a("s_waitcnt lgkmcnt(0)")
        c = f"v[{CC}:{CC+15}]" if ps else "0"
        a(f"v_mfma_f32_32x32x8_bf16 v[{SA}:{SA+15}], v[{K2}:{K2+1}], v[{Q2}:{Q2+1}], {c}")
        a(f"v_mfma_f32_32x32x16_bf16 v[{SA}:{SA+15}], v[{K1}:{K1+3}], v[{Q1}:{Q1+3}], v[{SA}:{SA+15}]")
        a("s_nop 11")
        if ps == 0:
            rowmax(a, SA, 8)
            a("v_max_f32 v7, v7, v8")
        else:
            for r in range(16): a(f"v_exp_f32 v{SA+r}, v{SA+r}")
            a("s_nop 0")
            for r in range(8): a(f"v_cvt_pk_bf16_f32 v{SB+r}, v{SA+2*r}, v{SA+2*r+1}")
            a("s_nop 1")
            a(f"v_mfma_f32_32x32x16_bf16 v[{OO}:{OO+15}], v[{VA}:{VA+3}], v[{SB}:{SB+3}], v[{OO}:{OO+15}]")
            a(f"v_mfma_f32_32x32x16_bf16 v[{OO}:{OO+15}], v[{VB}:{VB+3}], v[{SB+4}:{SB+7}], v[{OO}:{OO+15}]")
        a("s_add_u32 s44, s44, 1280")
        a("s_add_u32 s45, s45, 1280")
        a("s_add_u32 s43, s43, 1")
        a("s_cmp_lt_u32 s43, 64")
        a(f"s_cbranch_scc1 L_att_slow{ps}")
        if ps == 0:
            a("s_nop 7")
            for r in range(16): a(f"v_sub_f32 v{CC+r}, 0, v7")
    a("s_nop 11")
    a("s_branch L_att_store")

NSSM = int(os.environ.get("NSSM", "160"))
def k2(a):
    a.label("k2_kernel")
    a(f"s_cmp_ge_u32 s2, {256 + NSSM}")
    a("s_cbranch_scc1 L_k2_end")
    stamp(a, 0)
    a("s_load_dwordx2 s[8:9], s[0:1], 112")
    a("s_cmp_ge_u32 s2, 256")
    a("s_cbranch_scc1 L_ssm1")
    att(a)
    ssm1.ssm1(a)
    a.label("L_k2_end")
    a("s_endpgm")

def launches():
    return [("k2_kernel", k2, 256 + NSSM, 512, 81920, 128)]
```

```python
from asmlib import *
from layout import *
from k1 import *

OSTF = os.environ.get("OSTF", "")
def store_tile(a, acc, voff, rowbase):
    for r in range(16):
        row = rowbase + (r & 3) + 8 * (r >> 2)
        a(f"s_mov_b32 s30, {row * 5120}")
        a(f"buffer_store_dword v{acc+r}, v{voff}, s[20:23], s30 offen{OSTF}")

def k3(a):
    a.label("k3_kernel")
    a("s_cmp_ge_u32 s2, 240")
    a("s_cbranch_scc1 L_k3_end")
    stamp(a, 0)
    a("s_load_dwordx2 s[8:9], s[0:1], 112")
    a("s_load_dwordx4 s[4:7], s[0:1], 88")
    a("s_load_dwordx2 s[10:11], s[0:1], 0")
    a("v_lshrrev_b32 v1, 6, v0")
    a("v_and_b32 v2, 63, v0")
    a("v_readfirstlane_b32 s29, v1")
    a("s_and_b32 s24, s2, 7")
    a("s_lshr_b32 s25, s2, 3")
    a("s_lshl_b32 s26, s24, 1")
    a("s_and_b32 s27, s25, 1")
    a("s_add_u32 s26, s26, s27")
    a("s_lshr_b32 s27, s25, 1")
    a("s_lshl_b32 s35, s26, 7")
    a("s_cmp_ge_u32 s27, 10")
    a("s_cbranch_scc1 L_oproj")
    NSL, PRE, SLOT = 6, 4, 24576
    a("v_lshrrev_b32 v3, 3, v2")
    a("v_and_b32 v8, 7, v2")
    a("v_lshrrev_b32 v9, 1, v3")
    a("v_xor_b32 v10, v8, v9")
    a("v_xor_b32 v11, 4, v10")
    a("s_lshl_b32 s31, s29, 5")
    a("s_add_u32 s30, s35, s31")
    a("v_add_u32 v9, s30, v3")
    for (base, stride) in ((4, 2560), (12, 1280)):
        a(f"v_mul_u32_u24 v8, {stride}, v9")
        a(f"v_lshl_add_u32 v{base}, v10, 4, v8")
        a(f"v_lshl_add_u32 v{base+1}, v11, 4, v8")
        a(f"v_add_u32 v{base+1}, {8 * stride - 1024}, v{base+1}")
        a(f"v_add_u32 v{base+2}, {16 * stride - 2048}, v{base}")
        a(f"v_add_u32 v{base+3}, {16 * stride - 2048}, v{base+1}")
    a("s_lshl_b32 s36, s27, 6")
    a("s_lshl_b32 s31, s29, 4")
    a("s_add_u32 s30, s36, s31")
    a("v_add_u32 v9, s30, v3")
    a(f"v_mul_u32_u24 v8, {W2_ROW}, v9")
    a("v_lshl_add_u32 v16, v10, 4, v8")
    a("v_lshl_add_u32 v17, v11, 4, v8")
    a(f"v_add_u32 v17, {8 * W2_ROW - 1024}, v17")
    a("s_lshl_b32 s34, s29, 12")
    a("s_lshl_b32 s33, s29, 11")
    a("s_lshl_b32 s37, s36, 1")
    a("s_waitcnt lgkmcnt(0)")
    a(f"s_add_u32 s12, s8, {WS_G}")
    a("s_addc_u32 s13, s9, 0")
    a("s_and_b32 s13, s13, 0xffff")
    a(f"s_mov_b32 s14, {2048 * 2560}")
    a("s_mov_b32 s15, 0x00020000")
    a(f"s_add_u32 s16, s8, {WS_W2}")
    a("s_addc_u32 s17, s9, 0")
    a("s_and_b32 s17, s17, 0xffff")
    a(f"s_mov_b32 s18, {640 * W2_ROW}")
    a("s_mov_b32 s19, 0x00020000")
    srd(a, 40, 10, 2621440)
    def dma(st):
        base = (st % NSL) * SLOT
        L = []
        for jj in range(4):
            pre = [f"s_add_u32 m0, s34, {base}", f"s_mov_b32 s32, {st * 128}"] if jj == 0 else []
            if st < 20: L.append(pre + [f"buffer_load_dwordx4 v{4+jj}, s[12:15], s32 offen offset:{jj*1024} lds"])
            else: L.append(pre + [f"buffer_load_dwordx4 v{12+jj}, s[40:43], s37 offen offset:{jj*1024} lds"])
        for jj in range(2):
            pre = [f"s_add_u32 m0, s33, {base + 16384}", "s_nop 0"] if jj == 0 else []
            L.append(pre + [f"buffer_load_dwordx4 v{16+jj}, s[16:19], s32 offen offset:{jj*1024} lds"])
        return L
    for st in range(PRE):
        for g in dma(st):
            for x in g: a(x)
    srd(a, 20, 6, 2048 * 5120)
    a("v_and_b32 v3, 31, v2")
    a("v_lshrrev_b32 v9, 5, v2")
    a("v_bfe_u32 v8, v2, 1, 3")
    a("v_xor_b32 v8, v8, v9")
    a("s_lshr_b32 s30, s29, 1")
    a("s_lshl_b32 s30, s30, 13")
    a("s_and_b32 s31, s29, 1")
    a("s_lshl_b32 s31, s31, 12")
    a("s_add_u32 s31, s31, 16384")
    a("v_lshlrev_b32 v10, 7, v3")
    for ks in range(4):
        a(f"v_xor_b32 v11, {2*ks}, v8")
        a(f"v_lshl_add_u32 v11, v11, 4, v10")
        a(f"v_add_u32 v{20+ks}, s30, v11")
        a(f"v_add_u32 v{24+ks}, s31, v11")
    for q in range(1, 3):
        for j in range(8):
            a(f"v_add_u32 v{20+8*q+j}, {q * 2 * SLOT}, v{20+j}")
    FRG, AC = 44, 72
    for i in range(32): a(f"v_mov_b32 v{AC+i}, 0")
    a("s_lshr_b32 s30, s29, 1")
    a("s_lshl_b32 s30, s30, 6")
    a("s_add_u32 s30, s30, s35")
    a("v_lshl_add_u32 v10, v9, 2, s30")
    a("v_mul_u32_u24 v10, 5120, v10")
    a("s_and_b32 s31, s29, 1")
    a("s_lshl_b32 s31, s31, 5")
    a("s_add_u32 s31, s31, s36")
    a("v_add_u32 v11, s31, v3")
    a("v_lshl_add_u32 v18, v11, 2, v10")
    def reads(st, ks, p):
        slot = st % NSL
        q, o = slot // 2, (slot % 2) * SLOT
        f = FRG + 12 * p
        return [f"ds_read_b128 v[{f}:{f+3}], v{20+8*q+ks} offset:{o}",
                f"ds_read_b128 v[{f+8}:{f+11}], v{24+8*q+ks} offset:{o}",
                f"ds_read_b128 v[{f+4}:{f+7}], v{20+8*q+ks} offset:{o+4096}"]
    def mfmas(p):
        f = FRG + 12 * p
        return [f"v_mfma_f32_32x32x16_bf16 v[{AC+16*ti}:{AC+16*ti+15}], v[{f+4*ti}:{f+4*ti+3}], v[{f+8}:{f+11}], v[{AC+16*ti}:{AC+16*ti+15}]" for ti in range(2)]
    stamp(a, 1)
    gemm_mainloop(a, 21, NSL, PRE, dma, reads, mfmas, [2, 3], [3, 0], [1, 1])
    stamp(a, 3)
    a("s_nop 10")
    store_tile(a, AC, 18, 0)
    store_tile(a, AC + 16, 18, 32)
    stamp(a, 4)
    stamp_out(a, 2)
    a("s_endpgm")
    a.label("L_oproj")
    NSL2, PRE2 = 5, 3
    a("s_sub_u32 s27, s27, 10")
    a("s_lshl_b32 s36, s27, 8")
    xw_gemm_setup(a, 1280, 1280, 35, 36, 29)
    a("s_waitcnt lgkmcnt(0)")
    a(f"s_add_u32 s12, s8, {WS_O}")
    a("s_addc_u32 s13, s9, 0")
    a("s_and_b32 s13, s13, 0xffff")
    a(f"s_mov_b32 s14, {2048 * 1280}")
    a("s_mov_b32 s15, 0x00020000")
    srd(a, 16, 4, 819200)
    for st in range(PRE2):
        for g in xw_dma(st, NSL2, 1280):
            for x in g: a(x)
    srd(a, 20, 6, 2048 * 5120)
    xw_read_setup(a, 29, 3)
    for i in range(64): a(f"v_mov_b32 v{ACC+i}, 0")
    a("s_lshr_b32 s30, s29, 1")
    a("s_lshl_b32 s30, s30, 6")
    a("s_add_u32 s30, s30, s35")
    a("v_lshrrev_b32 v9, 5, v2")
    a("v_lshl_add_u32 v10, v9, 2, s30")
    a("v_mul_u32_u24 v10, 5120, v10")
    a("s_and_b32 s31, s29, 1")
    a("s_lshl_b32 s31, s31, 6")
    a("s_lshl_b32 s30, s27, 7")
    a("s_add_u32 s31, s31, s30")
    a("s_add_u32 s31, s31, 640")
    a("v_and_b32 v3, 31, v2")
    a("v_add_u32 v11, s31, v3")
    a("v_lshl_add_u32 v16, v11, 2, v10")
    a("v_add_u32 v17, 128, v16")
    stamp(a, 1)
    gemm_mainloop(a, 10, NSL2, PRE2, lambda st: xw_dma(st, NSL2, 1280), lambda st, ks, p: xw_read(st, ks, p, NSL2),
                  xw_mfma, [3, 4, 6, 6], [3, 3, 0, 0], [0, 0, 1, 1])
    stamp(a, 3)
    a("s_nop 10")
    for t in (0, 2, 1, 3):
        store_tile(a, ACC + 16 * t, 16 + (t & 1), 32 * (t >> 1))
    stamp(a, 4)
    stamp_out(a, 2)
    a.label("L_k3_end")
    a("s_endpgm")

def launches():
    return [("k3_kernel", k3, 240, 256, 163840, 136)]
```

```python
HEADB = 81920
WS_Q = 0
WS_K = 0x280000
WS_V = 0x500000
WS_O = 0x780000
WS_G = 0xA00000
WS_W2 = 0xF00000
W2_ROW = 1344 * 2
WS_LAM = 0x1100000
WS_AGG = 0x1110000
WS_USED = 0x1200000
import math
QSCALE = math.log2(math.e) / math.sqrt(20.0)
import struct
def f2u(x):
    return struct.unpack("<I", struct.pack("<f", x))[0]
```

```python
from asmlib import *
from layout import *
from k1 import gemm_mainloop

FR = 24
AR, AI = 48, 64
NSL, PRE, SLOT = 5, 3, 16384

def pk(a, d, s0, sel0, s1, s2, neg=False):
    n = " neg_lo:[1,0,0] neg_hi:[1,0,0]" if neg else ""
    a(f"v_pk_fma_f32 v[{d}:{d+1}], v[{s0}:{s0+1}], v[{s1}:{s1+1}], v[{s2}:{s2+1}] op_sel:[{sel0},0,0] op_sel_hi:[{sel0},1,1]{n}")

def cstep(a, nr, ni, lam, gr, gi, ur, ui):
    a(f"v_fma_f32 v{nr}, v{lam}, v{gr}, v{ur}")
    a(f"v_fma_f32 v{ni}, v{lam}, v{gi}, v{ui}")
    a(f"v_fma_f32 v{nr}, -v{lam+1}, v{gi}, v{nr}")
    a(f"v_fma_f32 v{ni}, v{lam+1}, v{gr}, v{ni}")

def ssm1(a):
    a.label("L_ssm1")
    a("s_load_dwordx2 s[4:5], s[0:1], 0")
    a("s_load_dwordx4 s[20:23], s[0:1], 24")
    a("s_load_dwordx2 s[6:7], s[0:1], 104")
    a("v_lshrrev_b32 v1, 6, v0")
    a("v_and_b32 v2, 63, v0")
    a("v_readfirstlane_b32 s29, v1")
    a("s_sub_u32 s24, s2, 256")
    a("s_lshr_b32 s25, s24, 3")
    a("s_and_b32 s26, s24, 3")
    a("s_lshl_b32 s26, s26, 2")
    a("s_and_b32 s27, s25, 3")
    a("s_add_u32 s26, s26, s27")
    a("s_bfe_u32 s27, s24, 0x10002")
    a("s_mul_i32 s27, s27, 5")
    a("s_lshr_b32 s28, s25, 2")
    a("s_add_u32 s27, s27, s28")
    a("v_lshrrev_b32 v3, 2, v2")
    a("v_and_b32 v8, 3, v2")
    a("v_lshrrev_b32 v9, 2, v3")
    a("v_xor_b32 v8, v8, v9")
    a("s_lshl_b32 s30, s26, 7")
    a("s_lshl_b32 s31, s29, 4")
    a("s_add_u32 s30, s30, s31")
    a("v_add_u32 v9, s30, v3")
    a("v_mul_u32_u24 v9, 1280, v9")
    a("v_lshl_add_u32 v4, v8, 4, v9")
    a("s_lshl_b32 s30, s27, 6")
    a("s_and_b32 s31, s31, 63")
    a("s_add_u32 s30, s30, s31")
    a("v_add_u32 v9, s30, v3")
    a("v_mul_u32_u24 v9, 1280, v9")
    a("v_lshl_add_u32 v5, v8, 4, v9")
    a("s_lshl_b32 s34, s29, 10")
    a("s_waitcnt lgkmcnt(0)")
    srd(a, 12, 4, 2621440)
    a("s_cmp_lt_u32 s29, 4")
    a("s_cselect_b32 s16, s20, s22")
    a("s_cselect_b32 s17, s21, s23")
    a("s_and_b32 s17, s17, 0xffff")
    a("s_mov_b32 s18, 819200")
    a("s_mov_b32 s19, 0x00020000")
    def dma(st):
        base = (st % NSL) * SLOT
        return [[f"s_add_u32 m0, s34, {base}", f"s_mov_b32 s32, {st * 64}",
                 "buffer_load_dwordx4 v4, s[12:15], s32 offen lds"],
                [f"s_add_u32 m0, s34, {base + 8192}", "s_nop 0",
                 "buffer_load_dwordx4 v5, s[16:19], s32 offen lds"]]
    a(f"s_add_u32 s36, s8, {WS_LAM}")
    a("s_addc_u32 s37, s9, 0")
    a("s_and_b32 s37, s37, 0xffff")
    a(f"s_mov_b32 s38, {640 * 32}")
    a("s_mov_b32 s39, 0x00020000")
    a("v_and_b32 v10, 31, v2")
    a("s_and_b32 s30, s29, 1")
    a("s_lshl_b32 s30, s30, 5")
    a("s_lshl_b32 s31, s27, 6")
    a("s_add_u32 s33, s30, s31")
    a("v_add_u32 v11, s33, v10")
    a("v_lshlrev_b32 v9, 5, v11")
    a("buffer_load_dwordx2 v[80:81], v9, s[36:39], 0 offen")
    a("v_add_u32 v9, s31, v2")
    a("v_lshlrev_b32 v9, 5, v9")
    a("buffer_load_dwordx2 v[82:83], v9, s[36:39], 0 offen offset:8")
    a("buffer_load_dwordx2 v[84:85], v9, s[36:39], 0 offen offset:24")
    for st in range(PRE):
        for g in dma(st):
            for x in g: a(x)
    a("v_bfe_u32 v3, v2, 2, 1")
    a("v_lshlrev_b32 v3, 4, v3")
    a("v_and_b32 v8, 1, v2")
    a("v_lshl_add_u32 v3, v8, 3, v3")
    a("v_bfe_u32 v8, v2, 1, 1")
    a("v_add_u32 v3, v3, v8")
    a("v_bfe_u32 v8, v2, 3, 2")
    a("v_lshl_add_u32 v3, v8, 1, v3")
    a("s_lshr_b32 s31, s29, 1")
    a("s_lshl_b32 s35, s31, 5")
    a("v_add_u32 v3, s35, v3")
    a("v_lshrrev_b32 v9, 5, v2")
    a("v_bfe_u32 v8, v3, 2, 2")
    a("v_xor_b32 v8, v8, v9")
    a("v_lshlrev_b32 v3, 6, v3")
    a("v_lshl_add_u32 v12, v8, 4, v3")
    a("v_xor_b32 v13, 32, v12")
    a("v_add_u32 v3, s30, v10")
    a("v_bfe_u32 v8, v3, 2, 2")
    a("v_xor_b32 v8, v8, v9")
    a("v_lshlrev_b32 v3, 6, v3")
    a("v_lshl_add_u32 v14, v8, 4, v3")
    a("v_add_u32 v14, 8192, v14")
    a("v_xor_b32 v15, 32, v14")
    for q in range(4): a(f"v_add_u32 v{16+q}, 65536, v{12+q}")
    for r in range(32): a(f"v_mov_b32 v{AR+r}, 0")
    a("s_lshl_b32 s30, s26, 7")
    a("s_add_u32 s30, s30, s35")
    a("v_lshl_add_u32 v3, v9, 4, s30")
    a("v_mul_u32_u24 v3, 2560, v3")
    a("v_lshl_add_u32 v20, v11, 2, v3")
    a("s_lshl_b32 s30, s31, 2")
    a("v_lshl_add_u32 v3, v9, 1, s30")
    a("v_lshlrev_b32 v3, 8, v3")
    a("v_and_b32 v8, 63, v11")
    a("v_lshl_add_u32 v21, v8, 2, v3")
    a(f"s_add_u32 s40, s8, {WS_G}")
    a("s_addc_u32 s41, s9, 0")
    a("s_and_b32 s41, s41, 0xffff")
    a(f"s_mov_b32 s42, {2048 * 2560}")
    a("s_mov_b32 s43, 0x00020000")
    def reads(st, ks, p):
        slot = st % NSL
        q, o = (4, 0) if slot == 4 else (0, slot * SLOT)
        f = FR + 12 * p
        return [f"ds_read_b128 v[{f}:{f+3}], v{12+q+ks} offset:{o}",
                f"ds_read_b128 v[{f+4}:{f+7}], v{14+q+ks} offset:{o}",
                f"ds_read_b128 v[{f+8}:{f+11}], v{14+q+ks} offset:{o+4096}"]
    def mfmas(p):
        f = FR + 12 * p
        return [f"v_mfma_f32_32x32x16_bf16 v[{AR}:{AR+15}], v[{f}:{f+3}], v[{f+4}:{f+7}], v[{AR}:{AR+15}]",
                f"v_mfma_f32_32x32x16_bf16 v[{AI}:{AI+15}], v[{f}:{f+3}], v[{f+8}:{f+11}], v[{AI}:{AI+15}]"]
    stamp(a, 1)
    gemm_mainloop(a, 20, NSL, PRE, dma, reads, mfmas, [2, 3], [3, 0], [0, 1], nks=2)
    stamp(a, 3)
    a("s_setprio 3")
    a("s_barrier")
    a("s_nop 10")
    g = [(AR, AI), (24, 26), (28, 30)]
    cur = g[0]
    for k in range(1, 8):
        n = g[1 + (k & 1)]
        pk(a, n[0], 80, 0, cur[0], AR + 2 * k)
        pk(a, n[1], 80, 0, cur[1], AI + 2 * k)
        pk(a, n[0], 80, 1, cur[1], n[0], neg=True)
        pk(a, n[1], 80, 1, cur[0], n[1])
        cur = n
    a(f"ds_write2_b32 v21, v{cur[0]}, v{cur[0]+1} offset0:0 offset1:64")
    a("v_add_u32 v22, 4096, v21")
    a(f"ds_write2_b32 v22, v{cur[1]}, v{cur[1]+1} offset0:0 offset1:64")
    a("s_waitcnt lgkmcnt(0)")
    a("s_barrier")
    a("s_cmp_lg_u32 s29, 0")
    a("s_cbranch_scc1 L_ssm_join")
    a("v_lshlrev_b32 v3, 2, v2")
    for sgm in range(16):
        a(f"ds_read2st64_b32 v[{88+2*sgm}:{89+2*sgm}], v3 offset0:{sgm} offset1:{16+sgm}")
    a(f"s_add_u32 s44, s8, {WS_AGG}")
    a("s_addc_u32 s45, s9, 0")
    a("s_and_b32 s45, s45, 0xffff")
    a(f"s_mov_b32 s46, {16 * 5120}")
    a("s_mov_b32 s47, 0x00020000")
    srd(a, 48, 6, 256)
    a("s_mul_i32 s30, s26, 5120")
    a("s_lshl_b32 s31, s27, 9")
    a("s_add_u32 s30, s30, s31")
    a("v_lshl_add_u32 v8, v2, 3, s30")
    a("s_waitcnt lgkmcnt(0)")
    cur = (88, 89)
    for sgm in range(1, 16):
        n = (24, 25) if sgm & 1 else (26, 27)
        cstep(a, n[0], n[1], 82, cur[0], cur[1], 88 + 2 * sgm, 89 + 2 * sgm)
        cur = n
    assert cur == (24, 25)
    a("buffer_store_dwordx2 v[24:25], v8, s[44:47], 0 offen sc0 sc1")
    a("s_lshl_b32 s30, 1, s26")
    a("v_mov_b32 v9, s30")
    a("s_lshl_b32 s31, s27, 2")
    a("v_mov_b32 v10, s31")
    a("s_sub_u32 s30, s30, 1")
    a("s_waitcnt vmcnt(0)")
    a("s_mov_b64 exec, 1")
    a("buffer_atomic_or v9, v10, s[48:51], 0 offen sc1")
    a("s_mov_b32 s33, 0")
    a.label("L_ssm_poll")
    a("buffer_load_dword v11, v10, s[48:51], 0 offen sc0 sc1")
    a("s_waitcnt vmcnt(0)")
    a("v_readfirstlane_b32 s31, v11")
    a("s_add_u32 s33, s33, 1")
    a("s_and_b32 s31, s31, s30")
    a("s_cmp_eq_u32 s31, s30")
    a("s_cbranch_scc1 L_ssm_polled")
    a("s_sleep 4")
    a("s_cmp_lt_u32 s33, 0x40000")
    a("s_cbranch_scc1 L_ssm_poll")
    a.label("L_ssm_polled")
    a("s_mov_b64 exec, -1")
    for m in range(15):
        a(f"v_subrev_u32 v8, 5120, v8")
        a(f"buffer_load_dwordx2 v[{24+2*m}:{25+2*m}] , v8, s[44:47], 0 offen sc0 sc1".replace("] ,", "],") if m < 12 else
          f"buffer_load_dwordx2 v[{120+2*(m-12)}:{121+2*(m-12)}], v8, s[44:47], 0 offen sc0 sc1")
    reg = lambda m: 24 + 2 * m if m < 12 else 120 + 2 * (m - 12)
    a("s_waitcnt vmcnt(0)")
    cur = (reg(14), reg(14) + 1)
    for m in range(13, -1, -1):
        n = (4, 5) if m & 1 else (6, 7)
        cstep(a, n[0], n[1], 84, cur[0], cur[1], reg(m), reg(m) + 1)
        cur = n
    for sgm in range(16):
        a(f"ds_write2st64_b32 v3, v{cur[0]}, v{cur[1]} offset0:{sgm} offset1:{16+sgm}")
        if sgm < 15:
            n = (4, 5) if cur == (6, 7) else (6, 7)
            cstep(a, n[0], n[1], 82, cur[0], cur[1], 88 + 2 * sgm, 89 + 2 * sgm)
            cur = n
    a("s_waitcnt lgkmcnt(0)")
    a.label("L_ssm_join")
    a("s_barrier")
    stamp(a, 4)
    a("ds_read2_b32 v[24:25], v21 offset0:0 offset1:64")
    a("ds_read2_b32 v[26:27], v22 offset0:0 offset1:64")
    a("s_waitcnt lgkmcnt(0)")
    cur = (24, 26)
    for k in range(8):
        n = (AR + 2 * k, AI + 2 * k)
        pk(a, n[0], 80, 0, cur[0], n[0])
        pk(a, n[1], 80, 0, cur[1], n[1])
        pk(a, n[0], 80, 1, cur[1], n[0], neg=True)
        pk(a, n[1], 80, 1, cur[0], n[1])
        cur = n
    for r in range(16):
        a(f"v_cvt_pk_bf16_f32 v{28+r}, v{AR+r}, v{AI+r}")
        a(f"s_mov_b32 s30, {(8 * (r & 1) + (r >> 1)) * 2560}")
        a(f"buffer_store_dword v{28+r}, v20, s[40:43], s30 offen")
    stamp_out(a, 1)
    a("s_endpgm")
```

```python
import sys, importlib
from asmlib import *
from layout import *
import k1 as K1

HEADER = open("concat_heads__ssm_conv_s5__mha_block__prompt.s.ref").read().split("; Override launch")[0]

def build(kernels):
    out = HEADER
    for (name, fn, grid, block, lds, vgpr) in kernels:
        out += f"; @launch kernel={name} grid=({grid},1,1) block=({block},1,1) lds={lds}\n"
    out += '.amdgcn_target "amdgcn-amd-amdhsa--gfx950"\n.text\n'
    done = set()
    for (name, fn, grid, block, lds, vgpr) in kernels:
        if name in done: continue
        done.add(name)
        a = Asm()
        fn(a)
        out += f".globl {name}\n.p2align 8\n.type {name},@function\n" + a.text()
    out += '.section .rodata,"a"\n'
    done = set()
    for (name, fn, grid, block, lds, vgpr) in kernels:
        if name in done: continue
        done.add(name)
        out += ".p2align 6\n" + kdesc(name, vgpr)
    return out

if __name__ == "__main__":
    ks = [("k1_kernel", K1.k1, 256, 512 if K1.PF else 256, 163840, 176)]
    try:
        import k2 as K2
        ks += K2.launches()
    except ImportError:
        pass
    try:
        import k3 as K3
        ks += K3.launches()
    except ImportError:
        pass
    dst = sys.argv[1] if len(sys.argv) > 1 else "concat_heads__ssm_conv_s5__mha_block__prompt.s"
    open(dst, "w").write(build(ks))
    print("wrote", dst)
```

```python
from asmlib import *
from layout import *

def gemm_mainloop(a, nst, nslots, pre, dma_items, reads, mfmas, need, rpos, dpos, nks=4):
    assert nslots >= pre + 2 or nst <= nslots
    ndma = len(dma_items(0))
    vm_issued = [st for st in range(min(pre, nst)) for _ in range(ndma)]
    def wait_stage(st):
        n = sum(1 for x in vm_issued if x > st)
        a(f"s_waitcnt vmcnt({n})")
        a("s_barrier")
    wait_stage(0)
    stamp(a, 2)
    R = reads(0, 0, 0)
    for r in R: a(r)
    nr = len(R)
    p = 0
    for s in range(nst):
        D = dma_items(s + pre) if s + pre < nst else []
        di = 0
        for ks in range(nks):
            last = (s == nst - 1 and ks == nks - 1)
            if ks == nks - 1 and s + 1 < nst:
                wait_stage(s + 1)
            N = [] if last else (reads(s, ks + 1, p ^ 1) if ks < nks - 1 else reads(s + 1, 0, p ^ 1))
            ni = 0
            M = mfmas(p)
            done = 0
            for i, m in enumerate(M):
                if need[i] > done:
                    a(f"s_waitcnt lgkmcnt({nr - need[i] + ni})")
                    done = need[i]
                a(m)
                for _ in range(rpos[i]):
                    if ni < len(N): a(N[ni]); ni += 1
                for _ in range(dpos[i]):
                    if di < len(D):
                        for x in D[di]: a(x)
                        vm_issued.append(s + pre); di += 1
            assert ni == len(N)
            p ^= 1
        assert di == len(D)

def xw_gemm_setup(a, xstride, wstride, srow, scolb, swave):
    a("v_lshrrev_b32 v3, 3, v2")
    a("v_and_b32 v8, 7, v2")
    a("v_lshrrev_b32 v9, 1, v3")
    a("v_xor_b32 v10, v8, v9")
    a("v_xor_b32 v11, 4, v10")
    a(f"s_lshl_b32 s31, s{swave}, 5")
    a(f"s_add_u32 s30, s{srow}, s31")
    a("v_add_u32 v3, s30, v3")
    a(f"v_mul_u32_u24 v3, {xstride}, v3")
    a("v_lshl_add_u32 v4, v10, 4, v3")
    a("v_lshl_add_u32 v5, v11, 4, v3")
    a(f"v_add_u32 v5, {8 * xstride - 1024}, v5")
    a(f"v_add_u32 v6, {16 * xstride - 2048}, v4")
    a(f"v_add_u32 v7, {16 * xstride - 2048}, v5")
    a("v_lshrrev_b32 v3, 4, v2")
    a("v_and_b32 v8, 15, v2")
    a("v_lshlrev_b32 v9, 2, v3")
    a("v_xor_b32 v8, v8, v9")
    a(f"s_lshl_b32 s31, s{swave}, 4")
    a("v_add_u32 v3, s31, v3")
    a(f"v_mul_u32_u24 v3, {wstride}, v3")
    a("v_lshl_add_u32 v12, v8, 4, v3")
    a(f"v_add_u32 v12, s{scolb}, v12")
    for jj in range(1, 4):
        a(f"v_add_u32 v{12+jj}, {jj * (4 * wstride - 1024)}, v12")
    a(f"s_lshl_b32 s34, s{swave}, 12")

def xw_dma(st, nsl, wstride):
    base = (st % nsl) * 32768
    L = []
    for jj in range(4):
        pre = [f"s_add_u32 m0, s34, {base}", f"s_mov_b32 s32, {st * 128}"] if jj == 0 else []
        L.append(pre + [f"buffer_load_dwordx4 v{4+jj}, s[12:15], s32 offen offset:{jj*1024} lds"])
    for jj in range(4):
        pre = [f"s_add_u32 m0, s34, {base + 16384}", f"s_mov_b32 s33, {st * 64 * wstride}"] if jj == 0 else []
        L.append(pre + [f"buffer_load_dwordx4 v{12+jj}, s[16:19], s33 offen offset:{jj*1024} lds"])
    return L

def xw_read_setup(a, swave, nsets):
    a("v_and_b32 v3, 31, v2")
    a(f"s_lshr_b32 s30, s{swave}, 1")
    a("s_lshl_b32 s30, s30, 6")
    a("v_add_u32 v3, s30, v3")
    a("v_lshrrev_b32 v8, 1, v3")
    a("v_and_b32 v8, 7, v8")
    a("v_lshrrev_b32 v9, 5, v2")
    a("v_xor_b32 v8, v8, v9")
    a("v_lshlrev_b32 v3, 7, v3")
    for ks in range(4):
        a(f"v_xor_b32 v10, {2*ks}, v8")
        a(f"v_lshl_add_u32 v{20+ks}, v10, 4, v3")
    a("v_bfe_u32 v3, v2, 2, 2")
    a("v_lshl_add_u32 v8, v9, 3, v3")
    a("v_lshlrev_b32 v8, 8, v8")
    a("v_bfe_u32 v10, v2, 4, 1")
    a("v_lshlrev_b32 v10, 5, v10")
    a("v_and_b32 v11, 3, v2")
    a("v_lshl_add_u32 v10, v11, 3, v10")
    a("v_add3_u32 v8, v8, v10, 0")
    a("v_add_u32 v8, 16384, v8")
    a(f"s_and_b32 s30, s{swave}, 1")
    a("s_lshl_b32 s30, s30, 1")
    for fi in range(2):
        a(f"s_add_u32 s31, s30, {fi}")
        a("v_xor_b32 v10, s31, v3")
        a(f"v_lshl_add_u32 v{24+fi}, v10, 6, v8")
    for q in range(1, nsets):
        for j in range(6):
            a(f"v_add_u32 v{20+6*q+j}, {q * 65536}, v{20+j}")

STFLAG = os.environ.get("STFLAG", "")
FR = 40
ACC = 72

def xw_read(st, ks, p, nsl):
    slot = st % nsl
    q, o = slot // 2, (slot % 2) * 32768
    f = FR + 16 * p
    L = [f"ds_read_b128 v[{f}:{f+3}], v{20+6*q+ks} offset:{o}"]
    for fi in range(2):
        for qq in range(2):
            r = f + 8 + 4 * fi + 2 * qq
            L.append(f"ds_read_b64_tr_b16 v[{r}:{r+1}], v{24+6*q+fi} offset:{o + (16*ks + 4*qq) * 256}")
        if fi == 0:
            L.append(f"ds_read_b128 v[{f+4}:{f+7}], v{20+6*q+ks} offset:{o + 4096}")
    return L

def xw_mfma(p):
    f = FR + 16 * p
    L = []
    for (ti, fi) in ((0, 0), (1, 0), (0, 1), (1, 1)):
        c = ACC + 16 * (2 * ti + fi)
        L.append(f"v_mfma_f32_32x32x16_bf16 v[{c}:{c+15}], v[{f+4*ti}:{f+4*ti+3}], v[{f+8+4*fi}:{f+8+4*fi+3}], v[{c}:{c+15}]")
    return L

def k1(a):
    NSL = 5
    PRE = int(os.environ.get("PRE", "3"))
    a.label("k1_kernel")
    a("s_cmp_ge_u32 s2, 256")
    a("s_cbranch_scc1 L_k1_end")
    stamp(a, 0)
    a("s_load_dwordx4 s[4:7], s[0:1], 72")
    a("s_load_dwordx2 s[8:9], s[0:1], 112")
    if PF:
        a("v_cmp_le_u32 vcc, 256, v0")
        a("s_nop 3")
        a("s_cbranch_vccnz L_pf")
    a("s_and_b32 s24, s2, 7")
    a("s_lshr_b32 s25, s2, 3")
    a("s_and_b32 s26, s24, 3")
    a("s_lshl_b32 s26, s26, 2")
    a("s_and_b32 s27, s25, 3")
    a("s_add_u32 s26, s26, s27")
    a("s_lshr_b32 s27, s24, 2")
    a("s_lshl_b32 s27, s27, 3")
    a("s_lshr_b32 s28, s25, 2")
    a("s_add_u32 s27, s27, s28")
    a("s_cmp_eq_u32 s27, 15")
    a("s_cbranch_scc1 L_prep")
    a("v_lshrrev_b32 v1, 6, v0")
    a("v_and_b32 v2, 63, v0")
    a("v_readfirstlane_b32 s29, v1")
    a("s_lshl_b32 s35, s26, 7")
    a("s_lshl_b32 s36, s27, 8")
    xw_gemm_setup(a, 1280, 3840, 35, 36, 29)
    a("s_waitcnt lgkmcnt(0)")
    srd(a, 12, 4, 2621440)
    srd(a, 16, 6, 640 * 3840)
    for st in range(PRE):
        for g in xw_dma(st, NSL, 3840):
            for x in g: a(x)
    srd(a, 20, 8, WS_O)
    xw_read_setup(a, 29, 3)
    for i in range(64):
        a(f"v_mov_b32 v{ACC+i}, 0")
    a("s_mul_i32 s37, s27, 52")
    a("s_lshr_b32 s37, s37, 8")
    a("s_mul_i32 s38, s37, 5")
    a("s_sub_u32 s38, s27, s38")
    a("s_lshl_b32 s38, s38, 7")
    a("s_and_b32 s39, s29, 1")
    a("s_lshl_b32 s39, s39, 6")
    a("s_add_u32 s38, s38, s39")
    a("s_cmp_eq_u32 s37, 2")
    a("s_cselect_b32 s40, 16, 32")
    a("s_cselect_b32 s41, 320, 16")
    a("s_cmp_eq_u32 s37, 0")
    a(f"s_cselect_b32 s42, {f2u(QSCALE)}, 1.0")
    a(f"s_mul_i32 s43, s37, {WS_K}")
    a("s_lshr_b32 s44, s29, 1")
    a("s_lshl_b32 s44, s44, 2")
    a("s_lshl_b32 s45, s26, 3")
    a("s_add_u32 s44, s44, s45")
    a("s_mul_i32 s44, s44, 640")
    a("s_add_u32 s43, s43, s44")
    a("v_lshrrev_b32 v9, 5, v2")
    a("v_mul_lo_u32 v9, v9, s41")
    a("v_add_u32 v9, s43, v9")
    a("v_and_b32 v3, 31, v2")
    a("v_add_u32 v3, s38, v3")
    a(f"s_mov_b32 s46, {HEADB}")
    for fi in range(2):
        if fi: a("v_add_u32 v3, 32, v3")
        a("v_mul_u32_u24 v8, 3277, v3")
        a("v_lshrrev_b32 v8, 16, v8")
        a("v_mul_u32_u24 v10, 20, v8")
        a("v_sub_u32 v10, v3, v10")
        a("v_mul_lo_u32 v10, v10, s40")
        a("v_mul_lo_u32 v8, v8, s46")
        a(f"v_add3_u32 v{16+fi}, v8, v10, v9")
    stamp(a, 1)
    gemm_mainloop(a, 10, NSL, PRE, lambda st: xw_dma(st, NSL, 3840), lambda st, ks, p: xw_read(st, ks, p, NSL),
                  xw_mfma, [3, 4, 6, 6], [3, 3, 0, 0], [0, 0, 1, 1])
    stamp(a, 3)
    a("s_nop 9")
    for t4 in range(4):
        t = (0, 2, 1, 3)[t4]
        ti, fi = t >> 1, t & 1
        c = ACC + 16 * t
        for i in range(16):
            a(f"v_mul_f32 v{c+i}, s42, v{c+i}")
        for i in range(8):
            a(f"v_cvt_pk_bf16_f32 v{FR+8*t4+i}, v{c+2*i}, v{c+2*i+1}")
        for b in range(2):
            r = FR + 8 * t4 + 4 * b
            a(f"buffer_store_dwordx4 v[{r}:{r+3}], v{16+fi}, s[20:23], 0 offen offset:{(2*ti+b)*640}{STFLAG}")
    stamp(a, 4)
    stamp_out(a, 0)
    a("s_endpgm")
    prep(a)
    if PF: prefetch(a)
    a.label("L_k1_end")
    a("s_endpgm")

PF = int(os.environ.get("PF", "0"))
def prefetch(a):
    a.label("L_pf")
    a("s_load_dwordx2 s[12:13], s[0:1], 0")
    a("s_load_dwordx4 s[16:19], s[0:1], 24")
    a("s_load_dwordx2 s[20:21], s[0:1], 88")
    a("v_and_b32 v1, 255, v0")
    if PF & 4:
        a("v_lshlrev_b32 v1, 6, v1")
    else:
        a("v_lshlrev_b32 v1, 4, v1")
    a("s_waitcnt lgkmcnt(0)")
    n = 0
    lst = [(4, 2621440), (6, 2457600)]
    if PF & 2: lst += [(12, 2621440), (16, 819200), (18, 819200), (20, 819200)]
    for (p, nb) in lst:
        srd(a, 24, p, nb)
        per = nb // 256
        a(f"s_mul_i32 s28, s2, {per}")
        a("v_add_u32 v2, s28, v1")
        if PF & 4:
            a(f"v_cmp_gt_u32 vcc, {per}, v1")
            a("s_and_saveexec_b64 s[30:31], vcc")
            a(f"buffer_load_dword v{8+n}, v2, s[24:27], 0 offen")
            a("s_mov_b64 exec, s[30:31]")
            n += 1
        else:
            for j in range((per + 4095) // 4096):
                if (j + 1) * 4096 > per:
                    a(f"v_cmp_gt_u32 vcc, {per - j * 4096}, v1")
                    a("s_and_saveexec_b64 s[30:31], vcc")
                a(f"s_mov_b32 s29, {j * 4096}")
                a(f"buffer_load_dwordx4 v[{8+4*n}:{11+4*n}], v2, s[24:27], s29 offen")
                if (j + 1) * 4096 > per: a("s_mov_b64 exec, s[30:31]")
                n += 1
    a("s_endpgm")

def cmul(a, dr, di, ar, ai, br, bi):
    a(f"v_mul_f32 v{dr}, v{ar}, v{br}")
    a(f"v_mul_f32 v{di}, v{ar}, v{bi}")
    a(f"v_fma_f32 v{dr}, -v{ai}, v{bi}, v{dr}")
    a(f"v_fma_f32 v{di}, v{ai}, v{br}, v{di}")

def prep(a):
    a.label("L_prep")
    a("s_load_dwordx4 s[12:15], s[0:1], 8")
    a("s_load_dwordx4 s[16:19], s[0:1], 40")
    a("s_load_dwordx4 s[20:23], s[0:1], 56")
    a("v_mul_u32_u24 v1, 820, v0")
    a("v_lshrrev_b32 v1, 16, v1")
    a("v_mul_u32_u24 v2, 80, v1")
    a("v_sub_u32 v2, v0, v2")
    a("s_mul_i32 s28, s26, 40")
    a("v_add_u32 v3, s28, v1")
    a("v_mul_u32_u24 v4, 1280, v3")
    a("v_lshl_add_u32 v4, v2, 4, v4")
    a(f"v_mul_u32_u24 v5, {W2_ROW}, v3")
    a("v_lshl_add_u32 v5, v2, 5, v5")
    a("v_mov_b32 v6, 0x7f000000")
    a("v_cmp_gt_u32 vcc, 240, v0")
    a("s_nop 1")
    a("v_cndmask_b32 v4, v6, v4, vcc")
    a("v_cndmask_b32 v5, v6, v5, vcc")
    a("v_cmp_eq_u32 vcc, 0, v1")
    a("s_nop 1")
    a("v_cndmask_b32 v7, v6, v4, vcc")
    a("v_cndmask_b32 v8, v6, v5, vcc")
    a("s_waitcnt lgkmcnt(0)")
    srd(a, 36, 16, 819200)
    srd(a, 40, 18, 819200)
    srd(a, 44, 12, 1280)
    srd(a, 48, 14, 1280)
    srd(a, 52, 20, 1280)
    srd(a, 56, 22, 1280)
    a(f"s_add_u32 s60, s8, {WS_W2}")
    a("s_addc_u32 s61, s9, 0")
    a("s_and_b32 s61, s61, 0xffff")
    a(f"s_mov_b32 s62, {640 * W2_ROW}")
    a("s_mov_b32 s63, 0x00020000")
    a(f"s_add_u32 s64, s8, {WS_LAM}")
    a("s_addc_u32 s65, s9, 0")
    a("s_and_b32 s65, s65, 0xffff")
    a("s_cmp_eq_u32 s26, 0")
    a(f"s_cselect_b32 s66, {640 * 32}, 0")
    a("s_mov_b32 s67, 0x00020000")
    a("v_lshlrev_b32 v9, 1, v0")
    for j in range(3):
        a(f"buffer_load_ushort v{10+3*j}, v9, s[44:47], 0 offen offset:{512*j}")
        a(f"buffer_load_ushort v{11+3*j}, v9, s[48:51], 0 offen offset:{512*j}")
        a(f"buffer_load_ushort v{12+3*j}, v9, s[52:55], 0 offen offset:{512*j}")
    CB = 64
    for j in range(14):
        vo = 4 if j < 13 else 7
        a(f"s_mov_b32 s30, {j * 3 * 1280}")
        a(f"buffer_load_dwordx4 v[{CB+8*j}:{CB+8*j+3}], v{vo}, s[36:39], s30 offen")
        a(f"buffer_load_dwordx4 v[{CB+8*j+4}:{CB+8*j+7}], v{vo}, s[40:43], s30 offen")
    a("s_waitcnt vmcnt(28)")
    LOG2E = f2u(math.log2(math.e))
    INV2PI = f2u(1.0 / (2 * math.pi))
    for j in range(3):
        lr, li, ld = 10 + 3 * j, 11 + 3 * j, 12 + 3 * j
        a(f"v_lshlrev_b32 v{lr}, 16, v{lr}")
        a(f"v_lshlrev_b32 v{li}, 16, v{li}")
        a(f"v_lshlrev_b32 v{ld}, 16, v{ld}")
        a(f"v_mul_f32 v{ld}, {LOG2E}, v{ld}")
        a(f"v_exp_f32 v{ld}, v{ld}")
        a("s_nop 0")
        a(f"v_cvt_pk_bf16_f32 v{ld}, v{ld}, v{ld}")
        a(f"v_lshlrev_b32 v{ld}, 16, v{ld}")
        a(f"v_mul_f32 v20, v{ld}, v{lr}")
        a(f"v_mul_f32 v21, v{ld}, v{li}")
        a(f"v_mul_f32 v20, {LOG2E}, v20")
        a(f"v_mul_f32 v21, {INV2PI}, v21")
        a("v_exp_f32 v20, v20")
        a("v_fract_f32 v21, v21")
        a("v_cos_f32 v22, v21")
        a("v_sin_f32 v23, v21")
        a("s_nop 0")
        a("v_mul_f32 v24, v20, v22")
        a("v_mul_f32 v25, v20, v23")
        a("v_add_f32 v20, -1.0, v24")
        a(f"v_mul_f32 v21, v{lr}, v{lr}")
        a(f"v_fma_f32 v21, v{li}, v{li}, v21")
        a("v_rcp_f32 v21, v21")
        a(f"v_mul_f32 v22, v20, v{lr}")
        a(f"v_fma_f32 v22, v25, v{li}, v22")
        a(f"v_mul_f32 v23, v25, v{lr}")
        a(f"v_fma_f32 v23, -v20, v{li}, v23")
        a("v_add_f32 v21, v21, v21")
        a("v_mul_f32 v22, v22, v21")
        a("v_mul_f32 v23, v23, v21")
        a("v_lshlrev_b32 v20, 3, v0")
        a(f"ds_write_b64 v20, v[22:23] offset:{2048*j}")
        cmul(a, 32, 33, 24, 25, 24, 25)
        cmul(a, 34, 35, 32, 33, 32, 33)
        cmul(a, 26, 27, 34, 35, 34, 35)
        cmul(a, 28, 29, 26, 27, 26, 27)
        cmul(a, 32, 33, 28, 29, 28, 29)
        cmul(a, 34, 35, 32, 33, 32, 33)
        cmul(a, 30, 31, 34, 35, 34, 35)
        a("v_lshlrev_b32 v20, 5, v0")
        a(f"v_add_u32 v20, {8192*j}, v20")
        a("buffer_store_dwordx4 v[24:27], v20, s[64:67], 0 offen")
        a("buffer_store_dwordx4 v[28:31], v20, s[64:67], 0 offen offset:16")
        a("s_nop 1")
    for ps in range(2):
        a(f"v_add_u32 v20, {256*ps}, v0")
        a("v_lshrrev_b32 v21, 3, v20")
        a("v_add_u32 v21, s28, v21")
        a("v_lshlrev_b32 v22, 1, v21")
        a(f"buffer_load_ushort v{36+ps}, v22, s[56:59], 0 offen")
        a("v_and_b32 v22, 7, v20")
        a(f"v_mul_u32_u24 v23, {W2_ROW}, v21")
        a(f"v_lshl_add_u32 v23, v22, 4, v23")
        a(f"v_add_u32 v{38+ps}, 2560, v23")
        a("v_and_b32 v21, 63, v21")
        a("v_lshlrev_b32 v22, 3, v22")
        a(f"v_sub_u32 v{40+ps}, v21, v22")
    a("v_cmp_gt_u32 vcc, 64, v0")
    a("s_nop 1")
    a("v_cndmask_b32 v39, v6, v39, vcc")
    a("s_waitcnt lgkmcnt(0)")
    a("s_barrier")
    a("v_lshlrev_b32 v20, 6, v2")
    for q in range(4):
        a(f"ds_read_b128 v[{44+4*q}:{47+4*q}], v20 offset:{16*q}")
    a("s_waitcnt vmcnt(0)")
    for ps in range(2):
        a(f"v_and_b32 v20, 1, v{40+ps}")
        a("v_lshlrev_b32 v20, 4, v20")
        a(f"v_lshlrev_b32 v21, v20, v{36+ps}")
        a(f"v_lshrrev_b32 v20, 1, v{40+ps}")
        for q in range(4):
            a(f"v_cmp_eq_u32 vcc, {q}, v20")
            a("s_nop 1")
            a(f"v_cndmask_b32 v{24+q}, 0, v21, vcc")
        a(f"buffer_store_dwordx4 v[24:27], v{38+ps}, s[60:63], 0 offen")
        a("s_nop 1")
    a("s_waitcnt lgkmcnt(0)")
    a("s_mov_b32 s31, 0xffff0000")
    for j in range(14):
        cr, ci = CB + 8 * j, CB + 8 * j + 4
        o = 24 + 8 * (j & 1)
        for e in range(8):
            if e & 1:
                a(f"v_and_b32 v20, s31, v{cr + e//2}")
                a(f"v_and_b32 v21, s31, v{ci + e//2}")
            else:
                a(f"v_lshlrev_b32 v20, 16, v{cr + e//2}")
                a(f"v_lshlrev_b32 v21, 16, v{ci + e//2}")
            ca, cb = 44 + 2 * e, 45 + 2 * e
            a(f"v_mul_f32 v22, v{ca}, v20")
            a(f"v_mul_f32 v23, v{ca}, v21")
            a(f"v_fma_f32 v22, -v{cb}, v21, v22")
            a(f"v_fma_f32 v23, v{cb}, v20, v23")
            a(f"v_cvt_pk_bf16_f32 v{o+e}, v22, -v23")
        vo = 5 if j < 13 else 8
        a(f"s_mov_b32 s30, {j * 3 * W2_ROW}")
        a(f"buffer_store_dwordx4 v[{o}:{o+3}], v{vo}, s[60:63], s30 offen{STFLAG}")
        a(f"buffer_store_dwordx4 v[{o+4}:{o+7}], v{vo}, s[60:63], s30 offen offset:16{STFLAG}")
    stamp_out(a, 0)
    a("s_endpgm")
```

```python
from asmlib import *
from layout import *
import ssm1

SA, SB, OO, CC, Q1, Q2, K2, K1, VA, VB = 16, 32, 48, 64, 80, 84, 86, 88, 92, 96
SLOTB = 20480
PRIV = 61440

def k_reads(t, nxt):
    ak, ak2 = (7, 8) if nxt else (4, 5)
    o = t * 1280
    return [f"ds_read_b64_tr_b16 v[{K2}:{K2+1}], v{ak2} offset:{o}",
            f"ds_read_b64_tr_b16 v[{K1}:{K1+1}], v{ak} offset:{o}",
            f"ds_read_b64_tr_b16 v[{K1+2}:{K1+3}], v{ak} offset:{o+128}"]
def v_reads(t, nxt):
    av = 9 if nxt else 6
    o = t * 1280
    return ["s_mov_b64 exec, s[40:41]",
            f"ds_read_b128 v[{VA}:{VA+3}], v{av} offset:{o}",
            f"ds_read_b128 v[{VB}:{VB+3}], v{av} offset:{o+640}",
            "s_mov_b64 exec, -1"]

def issue_chunk(a):
    a("s_mov_b32 m0, s47")
    a("s_add_u32 s48, s47, 8192")
    a("buffer_load_dwordx4 v3, s[12:15], s44 offen lds")
    a("s_mov_b32 m0, s48")
    a("s_add_u32 s48, s47, 16384")
    a("buffer_load_dwordx4 v3, s[12:15], s45 offen lds")
    L = a.newlabel("skip3")
    a("s_cmp_ge_u32 s29, 4")
    a(f"s_cbranch_scc1 {L}")
    a("s_mov_b32 m0, s48")
    a("s_nop 0")
    a("buffer_load_dwordx4 v3, s[12:15], s46 offen lds")
    a.label(L)
    for i in range(3):
        a(f"s_add_u32 s{44+i}, s{44+i}, 10240")

RAMP = eval(os.environ.get("RAMP", "{}"))
SCHED = int(os.environ.get("SCHED", "1"))
def tile_body(a, A, B, t):
    x8 = f"v_mfma_f32_32x32x8_bf16 v[{B}:{B+15}], v[{K2}:{K2+1}], v[{Q2}:{Q2+1}], v[{CC}:{CC+15}]"
    x16 = f"v_mfma_f32_32x32x16_bf16 v[{B}:{B+15}], v[{K1}:{K1+3}], v[{Q1}:{Q1+3}], v[{B}:{B+15}]"
    pva = f"v_mfma_f32_32x32x16_bf16 v[{OO}:{OO+15}], v[{VA}:{VA+3}], v[{A}:{A+3}], v[{OO}:{OO+15}]"
    pvb = f"v_mfma_f32_32x32x16_bf16 v[{OO}:{OO+15}], v[{VB}:{VB+3}], v[{A+8}:{A+11}], v[{OO}:{OO+15}]"
    def ex(lo, hi):
        for r in range(lo, hi): a(f"v_exp_f32 v{A+r}, v{A+r}")
    def cv(b):
        for r in range(4): a(f"v_cvt_pk_bf16_f32 v{A+b+r}, v{A+b+2*r}, v{A+b+1+2*r}")
    kr = k_reads((t + 2) % 8, t + 2 >= 8)
    vr_ = v_reads((t + 1) % 8, t + 1 >= 8)
    if SCHED == 0:
        a("s_waitcnt lgkmcnt(2)"); a(x8); ex(0, 4); a(x16)
        for x in kr: a(x)
        ex(4, 8); cv(0); ex(8, 12)
        a("s_waitcnt lgkmcnt(3)"); a(pva); ex(12, 16); cv(8); a("s_nop 1"); a(pvb)
        for x in vr_: a(x)
    elif SCHED == 1:
        ex(0, 4); a("s_waitcnt lgkmcnt(2)"); a(x8); ex(4, 8); cv(0); a(x16)
        for x in kr: a(x)
        ex(8, 12); a("s_waitcnt lgkmcnt(3)"); a(pva); ex(12, 16); cv(8); a("s_nop 1"); a(pvb)
        for x in vr_: a(x)
    elif SCHED == 2:
        ex(0, 4); a(x8); ex(4, 8); cv(0); a(x16)
        ex(8, 12); a(pva); ex(12, 16); cv(8); a("s_nop 1"); a(pvb)
    elif SCHED == 3:
        vb = v_reads(t, False)
        ex(0, 2)
        for r in range(2, 4): a(f"v_cvt_pk_bf16_f32 v{B+8+r}, v{B+8+2*r}, v{B+9+2*r}")
        ex(2, 4)
        a("s_waitcnt lgkmcnt(4)")
        a(f"v_mfma_f32_32x32x16_bf16 v[{OO}:{OO+15}], v[{VB}:{VB+3}], v[{B+8}:{B+11}], v[{OO}:{OO+15}]")
        a(vb[0]); a(vb[2]); a(vb[3])
        ex(4, 8)
        a("s_waitcnt lgkmcnt(2)")
        a(x8); ex(8, 10); cv(0); a(x16)
        for x in kr: a(x)
        ex(10, 14)
        a("s_waitcnt lgkmcnt(4)")
        a(pva)
        a(vr_[0]); a(vr_[1]); a(vr_[3])
        ex(14, 16)
        for r in range(2): a(f"v_cvt_pk_bf16_f32 v{A+8+r}, v{A+8+2*r}, v{A+9+2*r}")
    elif SCHED == 4:
        vbp = VB if t % 2 else VB + 4
        vbn = VB + 4 if t % 2 else VB
        av = 9 if t + 1 >= 8 else 6
        o = ((t + 1) % 8) * 1280
        ex(0, 2)
        for r in range(2, 4): a(f"v_cvt_pk_bf16_f32 v{B+8+r}, v{B+8+2*r}, v{B+9+2*r}")
        ex(2, 4)
        a(f"v_mfma_f32_32x32x16_bf16 v[{OO}:{OO+15}], v[{vbp}:{vbp+3}], v[{B+8}:{B+11}], v[{OO}:{OO+15}]")
        ex(4, 8)
        a("s_waitcnt lgkmcnt(0)")
        a(x8); ex(8, 10); cv(0); a(x16)
        for x in kr: a(x)
        ex(10, 14)
        a(pva)
        a("s_mov_b64 exec, s[40:41]")
        a(f"ds_read_b128 v[{VA}:{VA+3}], v{av} offset:{o}")
        a(f"ds_read_b128 v[{vbp}:{vbp+3}], v{av} offset:{o+640}")
        a("s_mov_b64 exec, -1")
        ex(14, 16)
        for r in range(2): a(f"v_cvt_pk_bf16_f32 v{A+8+r}, v{A+8+2*r}, v{A+9+2*r}")

def finish(a, check):
    a("s_nop 11")
    if check:
        a(f"v_mov_b32 v{SA}, v{OO+12}")
        for r in range(12): a(f"v_fma_f32 v{SA}, v{OO+r}, 0, v{SA}")
        a(f"v_cmp_gt_f32 vcc, {hex(f2u(2.0**40))}, v{SA}")
        a("s_nop 3")
        a("s_cmp_eq_u64 vcc, -1")
        a("s_cbranch_scc0 L_att_slow")
        a.label("L_att_store")
    a(f"v_rcp_f32 v{SA}, v{OO+12}")
    a("s_nop 0")
    for r in range(12): a(f"v_mul_f32 v{OO+r}, v{OO+r}, v{SA}")
    for r in range(6): a(f"v_cvt_pk_bf16_f32 v{SB+r}, v{OO+2*r}, v{OO+2*r+1}")
    a(f"buffer_store_dwordx2 v[{SB}:{SB+1}], v13, s[16:19], 0 offen")
    a(f"buffer_store_dwordx2 v[{SB+2}:{SB+3}], v13, s[16:19], 0 offen offset:16")
    a(f"buffer_store_dwordx2 v[{SB+4}:{SB+5}], v14, s[16:19], 0 offen offset:32")

def rowmax(a, S, dst):
    a(f"v_max3_f32 v{dst}, v{S}, v{S+1}, v{S+2}")
    for r in range(3, 15, 2): a(f"v_max3_f32 v{dst}, v{dst}, v{S+r}, v{S+r+1}")
    a(f"v_max_f32 v{dst}, v{dst}, v{S+15}")
    a(f"v_mov_b32 v15, v{dst}")
    a("s_nop 1")
    a(f"v_permlane32_swap_b32 v15, v{dst}")
    a("s_nop 1")
    a(f"v_max_f32 v{dst}, v{dst}, v15")

def att(a):
    a("v_lshrrev_b32 v1, 6, v0")
    a("v_and_b32 v2, 63, v0")
    a("v_readfirstlane_b32 s29, v1")
    a("s_and_b32 s24, s2, 7")
    a("s_lshr_b32 s25, s2, 3")
    a("s_lshl_b32 s26, s24, 2")
    a("s_lshr_b32 s27, s25, 3")
    a("s_add_u32 s26, s26, s27")
    a("s_and_b32 s27, s25, 7")
    a("s_lshl_b32 s27, s27, 3")
    a("s_add_u32 s27, s27, s29")
    a(f"s_mul_i32 s28, s26, {HEADB}")
    a("v_lshlrev_b32 v3, 4, v2")
    a("s_lshl_b32 s47, s29, 10")
    a("s_add_u32 s30, s28, s47")
    a(f"s_add_u32 s44, s30, {WS_K}")
    a("s_cmp_lt_u32 s29, 2")
    a(f"s_mov_b32 s31, {WS_K + 8192}")
    a(f"s_cselect_b32 s31, s31, {WS_V + 8192 - 10240}")
    a("s_add_u32 s45, s30, s31")
    a(f"s_add_u32 s46, s30, {WS_V + 16384 - 10240}")
    a("s_mul_i32 s31, s27, 1280")
    a("s_add_u32 s31, s31, s28")
    a("s_mul_i32 s42, s29, 2560")
    a(f"s_add_u32 s42, s42, {PRIV}")
    a("s_waitcnt lgkmcnt(0)")
    srd(a, 12, 8, WS_O)
    a("s_mov_b32 m0, s42")
    a("s_nop 0")
    a("buffer_load_dwordx4 v3, s[12:15], s31 offen lds")
    a("buffer_load_dwordx4 v3, s[12:15], s31 offen offset:1024 lds")
    issue_chunk(a)
    a(f"s_add_u32 s47, s47, {SLOTB}")
    issue_chunk(a)
    a(f"s_add_u32 s47, s47, {SLOTB}")
    a(f"s_add_u32 s16, s8, {WS_O}")
    a("s_addc_u32 s17, s9, 0")
    a("s_and_b32 s17, s17, 0xffff")
    a(f"s_mov_b32 s18, {2048 * 1280}")
    a("s_mov_b32 s19, 0x00020000")
    a("s_mov_b32 s40, 0x000fffff")
    a("s_mov_b32 s41, 0x000fffff")
    a("v_bfe_u32 v4, v2, 4, 1")
    a("v_mul_u32_u24 v4, 640, v4")
    a("v_bfe_u32 v5, v2, 2, 2")
    a("v_lshl_add_u32 v4, v5, 5, v4")
    a("v_and_b32 v5, 1, v2")
    a("v_lshl_add_u32 v4, v5, 4, v4")
    a("v_bfe_u32 v5, v2, 1, 1")
    a("v_lshl_add_u32 v4, v5, 3, v4")
    a("v_add_u32 v11, 512, v4")
    a("v_lshrrev_b32 v5, 5, v2")
    a("v_lshl_add_u32 v10, v5, 8, v4")
    a("v_and_b32 v6, 31, v2")
    a("v_mul_u32_u24 v7, 320, v5")
    a("v_lshl_add_u32 v12, v6, 4, v7")
    a("v_add_u32 v12, 10240, v12")
    a("s_lshl_b32 s30, s27, 5")
    a("v_add_u32 v7, s30, v6")
    a("v_mul_u32_u24 v7, 1280, v7")
    a("s_mul_i32 s30, s26, 40")
    a("v_lshl_add_u32 v13, v5, 3, v7")
    a("v_add_u32 v13, s30, v13")
    a("v_cmp_gt_u32 vcc, 32, v2")
    a("v_mov_b32 v7, 0x7f000000")
    a("s_nop 0")
    a("v_cndmask_b32 v14, v7, v13, vcc")
    for r in range(12): a(f"v_mov_b32 v{VA+r}, 0x3f803f80")
    for r in range(8): a(f"v_mov_b32 v{SB+8+r}, 0")
    for r in range(16): a(f"v_mov_b32 v{OO+r}, 0")
    a("v_add_u32 v7, s42, v10")
    a("v_add_u32 v8, s42, v11")
    a("v_mov_b32 v4, v10")
    a("v_mov_b32 v5, v11")
    a("v_mov_b32 v6, v12")
    a("s_waitcnt vmcnt(4)")
    a(f"ds_read_b64_tr_b16 v[{Q2}:{Q2+1}], v8")
    a(f"ds_read_b64_tr_b16 v[{Q1}:{Q1+1}], v7")
    a(f"ds_read_b64_tr_b16 v[{Q1+2}:{Q1+3}], v7 offset:128")
    stamp(a, 1)
    a("s_waitcnt vmcnt(2)")
    a("s_barrier")
    stamp(a, 2)
    for x in k_reads(0, False): a(x)
    a("s_waitcnt lgkmcnt(3)")
    a(f"v_cndmask_b32 v{Q2}, 0, v{Q2}, vcc")
    a(f"v_cndmask_b32 v{Q2+1}, 0, v{Q2+1}, vcc")
    a("s_waitcnt lgkmcnt(0)")
    a("s_nop 0")
    a(f"v_mfma_f32_32x32x8_bf16 v[{SA}:{SA+15}], v[{K2}:{K2+1}], v[{Q2}:{Q2+1}], 0")
    a(f"v_mfma_f32_32x32x16_bf16 v[{SA}:{SA+15}], v[{K1}:{K1+3}], v[{Q1}:{Q1+3}], v[{SA}:{SA+15}]")
    for x in k_reads(1, False): a(x)
    for n, x in enumerate(v_reads(0, False)):
        if not (SCHED == 3 and n == 2): a(x)
    a(f"v_add_u32 v7, {SLOTB}, v10")
    a(f"v_add_u32 v8, {SLOTB}, v11")
    a(f"v_add_u32 v9, {SLOTB}, v12")
    a("s_mov_b32 s43, 0")
    a(f"s_mov_b32 s49, {SLOTB}")
    a("s_nop 2")
    rowmax(a, SA, CC)
    a(f"v_sub_f32 v{CC}, 0, v{CC}")
    for r in range(1, 16): a(f"v_mov_b32 v{CC+r}, v{CC}")
    for r in range(16): a(f"v_add_f32 v{SA+r}, v{SA+r}, v{CC}")
    a(".p2align 4")
    a.label("L_att_loop")
    for t in range(8):
        if t == 6:
            L = a.newlabel("nodma")
            a("s_waitcnt vmcnt(0)")
            a("s_barrier")
            a("s_cmp_ge_u32 s43, 6")
            a(f"s_cbranch_scc1 {L}")
            issue_chunk(a)
            a(f"s_add_u32 s47, s47, {SLOTB}")
            a(f"s_cmp_ge_u32 s47, {3 * SLOTB}")
            a(f"s_cselect_b32 s48, {3 * SLOTB}, 0")
            a("s_sub_u32 s47, s47, s48")
            a.label(L)
        if RAMP and t in RAMP: a(f"s_setprio {RAMP[t]}")
        tile_body(a, SA if t % 2 == 0 else SB, SB if t % 2 == 0 else SA, t)
    a("v_mov_b32 v4, v7")
    a("v_mov_b32 v5, v8")
    a("v_mov_b32 v6, v9")
    a(f"s_add_u32 s49, s49, {SLOTB}")
    a(f"s_cmp_ge_u32 s49, {3 * SLOTB}")
    a("s_cselect_b32 s49, 0, s49")
    a("v_add_u32 v7, s49, v10")
    a("v_add_u32 v8, s49, v11")
    a("v_add_u32 v9, s49, v12")
    a("s_add_u32 s43, s43, 1")
    a("s_cmp_lt_u32 s43, 8")
    a("s_cbranch_scc1 L_att_loop")
    if SCHED >= 3:
        for r in range(2, 4): a(f"v_cvt_pk_bf16_f32 v{SB+8+r}, v{SB+8+2*r}, v{SB+9+2*r}")
        a("s_waitcnt lgkmcnt(0)")
        a("s_nop 0")
        vl = VB if SCHED == 3 else VB + 4
        a(f"v_mfma_f32_32x32x16_bf16 v[{OO}:{OO+15}], v[{vl}:{vl+3}], v[{SB+8}:{SB+11}], v[{OO}:{OO+15}]")
    stamp(a, 3)
    finish(a, True)
    stamp_out(a, 1)
    a("s_endpgm")
    a.label("L_att_slow")
    a("s_waitcnt lgkmcnt(0)")
    a("v_add_u32 v4, s42, v10")
    a("v_add_u32 v5, s42, v11")
    a("v_add_u32 v6, s42, v12")
    a(f"v_subrev_u32 v6, {10240 - 1280}, v6")
    a(f"v_mov_b32 v7, 0xff800000")
    for r in range(16): a(f"v_mov_b32 v{OO+r}, 0")
    a("s_add_u32 s48, s42, 1280")
    for ps in range(2):
        a(f"s_add_u32 s44, s28, {WS_K}")
        a(f"s_add_u32 s45, s28, {WS_V}")
        a("s_mov_b32 s43, 0")
        a.label(f"L_att_slow{ps}")
        a("s_mov_b32 m0, s42")
        a("s_nop 0")
        a("buffer_load_dwordx4 v3, s[12:15], s44 offen lds")
        a("s_mov_b64 exec, 0xffff")
        a("buffer_load_dwordx4 v3, s[12:15], s44 offen offset:1024 lds")
        a("s_mov_b64 exec, -1")
        if ps:
            a("s_mov_b32 m0, s48")
            a("s_nop 0")
            a("buffer_load_dwordx4 v3, s[12:15], s45 offen lds")
            a("s_mov_b64 exec, 0xffff")
            a("buffer_load_dwordx4 v3, s[12:15], s45 offen offset:1024 lds")
            a("s_mov_b64 exec, -1")
        a("s_waitcnt vmcnt(0)")
        for x in k_reads(0, False): a(x)
        if ps:
            for x in v_reads(0, False): a(x)
        a("s_waitcnt lgkmcnt(0)")
        c = f"v[{CC}:{CC+15}]" if ps else "0"
        a(f"v_mfma_f32_32x32x8_bf16 v[{SA}:{SA+15}], v[{K2}:{K2+1}], v[{Q2}:{Q2+1}], {c}")
        a(f"v_mfma_f32_32x32x16_bf16 v[{SA}:{SA+15}], v[{K1}:{K1+3}], v[{Q1}:{Q1+3}], v[{SA}:{SA+15}]")
        a("s_nop 11")
        if ps == 0:
            rowmax(a, SA, 8)
            a("v_max_f32 v7, v7, v8")
        else:
            for r in range(16): a(f"v_exp_f32 v{SA+r}, v{SA+r}")
            a("s_nop 0")
            for r in range(8): a(f"v_cvt_pk_bf16_f32 v{SB+r}, v{SA+2*r}, v{SA+2*r+1}")
            a("s_nop 1")
            a(f"v_mfma_f32_32x32x16_bf16 v[{OO}:{OO+15}], v[{VA}:{VA+3}], v[{SB}:{SB+3}], v[{OO}:{OO+15}]")
            a(f"v_mfma_f32_32x32x16_bf16 v[{OO}:{OO+15}], v[{VB}:{VB+3}], v[{SB+4}:{SB+7}], v[{OO}:{OO+15}]")
        a("s_add_u32 s44, s44, 1280")
        a("s_add_u32 s45, s45, 1280")
        a("s_add_u32 s43, s43, 1")
        a("s_cmp_lt_u32 s43, 64")
        a(f"s_cbranch_scc1 L_att_slow{ps}")
        if ps == 0:
            a("s_nop 7")
            for r in range(16): a(f"v_sub_f32 v{CC+r}, 0, v7")
    a("s_nop 11")
    a("s_branch L_att_store")

NSSM = int(os.environ.get("NSSM", "160"))
def k2(a):
    a.label("k2_kernel")
    a(f"s_cmp_ge_u32 s2, {256 + NSSM}")
    a("s_cbranch_scc1 L_k2_end")
    stamp(a, 0)
    a("s_load_dwordx2 s[8:9], s[0:1], 112")
    a("s_cmp_ge_u32 s2, 256")
    a("s_cbranch_scc1 L_ssm1")
    att(a)
    ssm1.ssm1(a)
    a.label("L_k2_end")
    a("s_endpgm")

def launches():
    return [("k2_kernel", k2, 256 + NSSM, 512, 81920, 128)]
```

```python
class Asm:
    def __init__(self):
        self.l = []
        self.uid = 0
    def __call__(self, s=""):
        for line in s.split("\n"):
            self.l.append("    " + line.strip() if line.strip() and not line.strip().endswith(":") else line.strip())
    def label(self, name):
        self.l.append(name + ":")
    def newlabel(self, base):
        self.uid += 1
        return f"L_{base}_{self.uid}"
    def text(self):
        return "\n".join(self.l) + "\n"

def vr(a, n=1):
    return f"v{a}" if n == 1 else f"v[{a}:{a+n-1}]"
def sr(a, n=1):
    return f"s{a}" if n == 1 else f"s[{a}:{a+n-1}]"

def srd(a, d, base, nbytes):
    a(f"s_mov_b32 s{d}, s{base}")
    a(f"s_and_b32 s{d+1}, s{base+1}, 0xffff")
    a(f"s_mov_b32 s{d+2}, {nbytes}")
    a(f"s_mov_b32 s{d+3}, 0x00020000")

def kdesc(name, vgpr, sgpr=96, acc=None):
    acc = acc or ((vgpr + 3) // 4 * 4)
    return f""".amdhsa_kernel {name}
  .amdhsa_next_free_vgpr {vgpr}
  .amdhsa_next_free_sgpr {sgpr}
  .amdhsa_accum_offset {acc}
  .amdhsa_group_segment_fixed_size 0
  .amdhsa_kernarg_size 120
  .amdhsa_user_sgpr_count 2
  .amdhsa_user_sgpr_kernarg_segment_ptr 1
  .amdhsa_system_sgpr_workgroup_id_x 1
.end_amdhsa_kernel
"""

import os
STAMP = int(os.environ.get("STAMP", "0"))
WS_STAMP = 0x1200000
def stamp(a, i):
    if not STAMP: return
    if STAMP == 2 and i: return
    a(f"s_memtime s[90:91]")
    if i == 0: a("s_memrealtime s[92:93]")
    a("s_waitcnt lgkmcnt(0)")
    a(f"s_mov_b32 s{80+i}, s90")
    if i == 0:
        a("s_mov_b32 s86, s92")
        for j in range(1, 6): a(f"s_mov_b32 s{80+j}, s90")
def stamp_out(a, kidx, wsptr=8):
    if not STAMP: return
    a("s_waitcnt vmcnt(0)")
    if STAMP == 2:
        a("s_load_dwordx2 s[88:89], s[0:1], 104")
        a("s_memrealtime s[90:91]")
        a("s_waitcnt lgkmcnt(0)")
        a(f"s_sub_u32 s92, s88, {512 * kidx}")
        a("s_subb_u32 s93, s89, 0")
        a("s_and_b32 s93, s93, 0xffff")
        a("s_mov_b32 s94, 256")
        a("s_mov_b32 s95, 0x00020000")
        a("s_not_b32 s88, s86")
        a("v_mov_b32 v2, s88")
        a("v_mov_b32 v3, s86")
        a("v_mov_b32 v4, s90")
        a(f"v_mov_b32 v1, {16 * kidx}")
        a("s_mov_b64 exec, 1")
        a("buffer_atomic_umax v2, v1, s[92:95], 0 offen sc1")
        a("buffer_atomic_umax v3, v1, s[92:95], 0 offen offset:4 sc1")
        a("buffer_atomic_umax v4, v1, s[92:95], 0 offen offset:8 sc1")
        a("s_waitcnt vmcnt(0)")
        return
    stamp(a, 5)
    a("s_memrealtime s[92:93]")
    a("s_waitcnt lgkmcnt(0)")
    a("s_mov_b32 s87, s92")
    a(f"s_add_u32 s92, s{wsptr}, {WS_STAMP + kidx * 512 * 256}")
    a(f"s_addc_u32 s93, s{wsptr+1}, 0")
    a("s_and_b32 s93, s93, 0xffff")
    a("s_mov_b32 s94, 0x20000")
    a("s_mov_b32 s95, 0x00020000")
    a("v_lshrrev_b32 v1, 6, v0")
    a("v_lshlrev_b32 v1, 5, v1")
    a("s_lshl_b32 s90, s2, 8")
    a("v_add_u32 v1, s90, v1")
    for j in range(8):
        a(f"v_mov_b32 v{2+j}, s{80+j}")
    a("s_mov_b64 exec, 1")
    a("buffer_store_dwordx4 v[2:5], v1, s[92:95], 0 offen")
    a("buffer_store_dwordx4 v[6:9], v1, s[92:95], 0 offen offset:16")
    a("s_waitcnt vmcnt(0)")
```

```python
class Asm:
    def __init__(self):
        self.l = []
        self.uid = 0
    def __call__(self, s=""):
        for line in s.split("\n"):
            self.l.append("    " + line.strip() if line.strip() and not line.strip().endswith(":") else line.strip())
    def label(self, name):
        self.l.append(name + ":")
    def newlabel(self, base):
        Asm.guid = getattr(Asm, "guid", 0) + 1
        return f"L_{base}_{Asm.guid}"
    def text(self):
        return "\n".join(self.l) + "\n"

def vr(a, n=1):
    return f"v{a}" if n == 1 else f"v[{a}:{a+n-1}]"
def sr(a, n=1):
    return f"s{a}" if n == 1 else f"s[{a}:{a+n-1}]"

def srd(a, d, base, nbytes):
    a(f"s_mov_b32 s{d}, s{base}")
    a(f"s_and_b32 s{d+1}, s{base+1}, 0xffff")
    a(f"s_mov_b32 s{d+2}, {nbytes}")
    a(f"s_mov_b32 s{d+3}, 0x00020000")

def kdesc(name, vgpr, sgpr=96, acc=None):
    acc = acc or ((vgpr + 3) // 4 * 4)
    return f""".amdhsa_kernel {name}
  .amdhsa_next_free_vgpr {vgpr}
  .amdhsa_next_free_sgpr {sgpr}
  .amdhsa_accum_offset {acc}
  .amdhsa_group_segment_fixed_size 0
  .amdhsa_kernarg_size 120
  .amdhsa_user_sgpr_count 2
  .amdhsa_user_sgpr_kernarg_segment_ptr 1
  .amdhsa_system_sgpr_workgroup_id_x 1
.end_amdhsa_kernel
"""

import os
STAMP = int(os.environ.get("STAMP", "0"))
WS_STAMP = 0x1200000
def stamp(a, i):
    if not STAMP: return
    if STAMP == 2 and i: return
    a(f"s_memtime s[90:91]")
    if i == 0: a("s_memrealtime s[92:93]")
    a("s_waitcnt lgkmcnt(0)")
    a(f"s_mov_b32 s{80+i}, s90")
    if i == 0:
        a("s_mov_b32 s86, s92")
        for j in range(1, 6): a(f"s_mov_b32 s{80+j}, s90")
def stamp_out(a, kidx, wsptr=8):
    if not STAMP: return
    a("s_waitcnt vmcnt(0)")
    if STAMP == 2:
        L = a.newlabel("nostamp")
        a("s_load_dwordx2 s[88:89], s[0:1], 104")
        a("s_memrealtime s[90:91]")
        a("s_waitcnt lgkmcnt(0)")
        a(f"s_add_u32 s92, s88, {(512 * (int(os.environ.get('DBGL', '2')) - kidx)) & 0xffffffff}")
        a(f"s_addc_u32 s93, s89, {-1 if int(os.environ.get('DBGL', '2')) < kidx else 0}")
        a("s_and_b32 s93, s93, 0xffff")
        a("s_mov_b32 s94, 256")
        a("s_mov_b32 s95, 0x00020000")
        a("v_mov_b32 v2, s86")
        a("v_mov_b32 v3, s90")
        a("s_cmp_eq_u32 s2, 7")
        a(f"s_cselect_b32 s88, {16 * kidx + 8}, 0x1000")
        a("s_cmp_eq_u32 s2, 0")
        a(f"s_cselect_b32 s88, {16 * kidx}, s88")
        a("v_mov_b32 v1, s88")
        a("v_cmp_eq_u32 vcc, 0, v0")
        a("s_and_saveexec_b64 s[88:89], vcc")
        a(f"s_cbranch_execz {L}")
        a("buffer_store_dwordx2 v[2:3], v1, s[92:95], 0 offen")
        a("s_waitcnt vmcnt(0)")
        a.label(L)
        return
    stamp(a, 5)
    a("s_memrealtime s[92:93]")
    a("s_waitcnt lgkmcnt(0)")
    a("s_mov_b32 s87, s92")
    a(f"s_add_u32 s92, s{wsptr}, {WS_STAMP + kidx * 512 * 256}")
    a(f"s_addc_u32 s93, s{wsptr+1}, 0")
    a("s_and_b32 s93, s93, 0xffff")
    a("s_mov_b32 s94, 0x20000")
    a("s_mov_b32 s95, 0x00020000")
    a("v_lshrrev_b32 v1, 6, v0")
    a("v_lshlrev_b32 v1, 5, v1")
    a("s_lshl_b32 s90, s2, 8")
    a("v_add_u32 v1, s90, v1")
    for j in range(8):
        a(f"v_mov_b32 v{2+j}, s{80+j}")
    a("s_mov_b64 exec, 1")
    a("buffer_store_dwordx4 v[2:5], v1, s[92:95], 0 offen")
    a("buffer_store_dwordx4 v[6:9], v1, s[92:95], 0 offen offset:16")
    a("s_waitcnt vmcnt(0)")
```
